```python
import torch

def _softmax(x, axis=-1):
    return torch.softmax(x, dim=axis)
def _gelu(x):
    return torch.nn.functional.gelu(x, approximate="tanh")
def _silu(x):
    return torch.nn.functional.silu(x)
def _sigmoid(x):
    return torch.sigmoid(x)
def _layernorm(x, axis=-1, eps=1e-5):
    m = x.mean(dim=axis, keepdim=True)
    v = x.var(dim=axis, keepdim=True, unbiased=False)
    return (x - m) / torch.sqrt(v + eps)
def _scatter_add(tgt, idx, src, axis=0):
    return tgt.clone().index_add_(axis, idx, src)
def _segment_sum(src, seg, n):
    out = torch.zeros((n,) + src.shape[1:], dtype=src.dtype)
    return out.index_add_(0, seg, src)
def _pad(x, pw):
    flat = tuple(v for pair in reversed(pw) for v in pair)
    return torch.nn.functional.pad(x, flat)

kernel_name = 'sequential_preLN__spectral_gfnet__dense_activation_mish__prompt'

def setup_inputs():

    _w = (lambda a: (lambda t: t.to(torch.bfloat16) if t.is_floating_point() else t)(torch.as_tensor(a)))
    def _A_setup():
        B, S, D = 1, 2048, 1024
        Df = D // 2 + 1
        return {
            "x": _w((lambda *s: torch.randn(*s, dtype=torch.bfloat16) * 0.05)(B, S, D)),
            "w_r": _w((lambda *s: torch.randn(*s, dtype=torch.bfloat16) * 0.4)(S, Df) * 0.02),
            "w_i": _w((lambda *s: torch.randn(*s, dtype=torch.bfloat16) * 0.4)(S, Df) * 0.02),
        }
    _A_in = _A_setup()

    def _B_setup():
        B, S, D, F = 1, 2048, 1024, 3584
        return {
            "x": _w((lambda *s: torch.randn(*s, dtype=torch.bfloat16) * 0.05)(B, S, D)),
            "w1": _w((lambda *s: torch.randn(*s, dtype=torch.bfloat16) * 0.8)(D, F) * (D ** -0.5)),
            "b1": _w((lambda *s: torch.randn(*s, dtype=torch.bfloat16) * 0.2)(F)),
            "w2": _w((lambda *s: torch.randn(*s, dtype=torch.bfloat16) * 0.1)(F, D) * (F ** -0.5)),
        }
    _B_in = _B_setup()

    return {
        "A_x": _A_in["x"],
        "A_w_r": _A_in["w_r"],
        "A_w_i": _A_in["w_i"],
        "B_x": _B_in["x"],
        "B_w1": _B_in["w1"],
        "B_b1": _B_in["b1"],
        "B_w2": _B_in["w2"],
    }

def reference(A_x, A_w_r, A_w_i, B_x, B_w1, B_b1, B_w2):
    def _A_ref(x, w_r, w_i):
        B, S, D = x.shape
        X = (lambda x, axes=(-2,-1): torch.fft.rfft2(x.float(), dim=axes))(x, axes=(-2, -1))
        W = w_r + 1j * w_i
        X = X * W
        y = (lambda x, s, axes=(-2,-1): torch.fft.irfft2(x, s=s, dim=axes).to(torch.bfloat16))(X, (S, D), axes=(-2, -1))
        return y

    def _B_ref(x, w1, b1, w2):
        h = torch.einsum("bsd,df->bsf", x, w1) + b1
        sp = torch.log1p(torch.exp(-torch.abs(h))) + torch.where(h > 0, h, torch.zeros_like(h))
        act = h * torch.tanh(sp)
        return torch.einsum("bsf,fd->bsd", act, w2)

    x = A_x
    h = x + _A_ref(_layernorm(x, axis=-1), A_w_r, A_w_i)
    h2 = h + _B_ref(_layernorm(h, axis=-1), B_w1, B_b1, B_w2)
    return h2
```

```python
import math, struct

def f2u(x):
    return struct.unpack('<I', struct.pack('<f', x))[0]

class Asm:
    def __init__(self):
        self.lines = []
    def __call__(self, s):
        for l in s.split('\n'):
            l = l.strip()
            if l:
                if l.startswith("buffer_") and "offset:" in l:
                    o = int(l.split("offset:")[1].split()[0], 0)
                    assert 0 <= o < 4096, l
                self.lines.append("    " + l)
    def label(self, l):
        self.lines.append(l + ":")
    def raw(self, s):
        self.lines.append(s)
    def text(self):
        return "\n".join(self.lines) + "\n"

class Pool:
    def __init__(self, lo, hi):
        self.free_list = list(range(lo, hi))
        self.hi_water = lo
    def alloc(self):
        r = self.free_list.pop(0)
        self.hi_water = max(self.hi_water, r + 1)
        return r
    def alloc_n(self, n, align=1):
        fl = list(self.free_list)
        s = set(fl)
        for r in fl:
            if r % align == 0 and all((r + i) in s for i in range(n)):
                for i in range(n):
                    self.free_list.remove(r + i)
                self.hi_water = max(self.hi_water, r + n)
                return r
        raise RuntimeError("no contiguous regs")
    def free(self, *rs):
        for r in rs:
            assert r not in self.free_list
            self.free_list.append(r)
    def free_n(self, r, n):
        self.free(*range(r, r + n))

def pad(n):
    return n + (n >> 3)

SQH = f2u(math.sqrt(0.5))
NSQH = f2u(-math.sqrt(0.5))

def dft_regs(E, P, regs, sign):
    n = len(regs)
    if n == 1:
        return regs
    Ev = dft_regs(E, P, regs[0::2], sign)
    Od = dft_regs(E, P, regs[1::2], sign)
    out = [None] * n
    for k in range(n // 2):
        er, ei = Ev[k]
        orr, oi = Od[k]
        if k == 0:
            tr = P.alloc(); ti = P.alloc()
            E(f"v_sub_f32 v{tr}, v{er}, v{orr}")
            E(f"v_sub_f32 v{ti}, v{ei}, v{oi}")
            E(f"v_add_f32 v{er}, v{er}, v{orr}")
            E(f"v_add_f32 v{ei}, v{ei}, v{oi}")
            P.free(orr, oi)
            out[k] = (er, ei); out[k + n // 2] = (tr, ti)
        elif 4 * k == n:
            tr = P.alloc(); ti = P.alloc()
            if sign < 0:
                E(f"v_sub_f32 v{tr}, v{er}, v{oi}")
                E(f"v_add_f32 v{ti}, v{ei}, v{orr}")
                E(f"v_add_f32 v{er}, v{er}, v{oi}")
                E(f"v_sub_f32 v{ei}, v{ei}, v{orr}")
            else:
                E(f"v_add_f32 v{tr}, v{er}, v{oi}")
                E(f"v_sub_f32 v{ti}, v{ei}, v{orr}")
                E(f"v_sub_f32 v{er}, v{er}, v{oi}")
                E(f"v_add_f32 v{ei}, v{ei}, v{orr}")
            P.free(orr, oi)
            out[k] = (er, ei); out[k + n // 2] = (tr, ti)
        elif 8 * k == n or 8 * k == 3 * n:
            sr = P.alloc(); dr = P.alloc()
            E(f"v_add_f32 v{sr}, v{orr}, v{oi}")
            E(f"v_sub_f32 v{dr}, v{oi}, v{orr}")
            if 8 * k == n:
                if sign < 0: (ar, asg), (ai, isg) = (sr, 1), (dr, 1)
                else:        (ar, asg), (ai, isg) = (dr, -1), (sr, 1)
            else:
                if sign < 0: (ar, asg), (ai, isg) = (dr, 1), (sr, -1)
                else:        (ar, asg), (ai, isg) = (sr, -1), (dr, -1)
            cp = lambda sg: f"0x{(SQH if sg > 0 else NSQH):08x}"
            E(f"v_fmamk_f32 v{orr}, v{ar}, {cp(-asg)}, v{er}")
            E(f"v_fmamk_f32 v{oi}, v{ai}, {cp(-isg)}, v{ei}")
            E(f"v_fmamk_f32 v{er}, v{ar}, {cp(asg)}, v{er}")
            E(f"v_fmamk_f32 v{ei}, v{ai}, {cp(isg)}, v{ei}")
            P.free(sr, dr)
            out[k] = (er, ei); out[k + n // 2] = (orr, oi)
        else:
            raise RuntimeError("radix too big")
    return out

def cmul_inplace(E, P, u, c, s):
    ur, ui = u
    tr = P.alloc(); ti = P.alloc()
    E(f"v_mul_f32 v{tr}, v{ur}, v{c}")
    E(f"v_mul_f32 v{ti}, v{ur}, v{s}")
    E(f"v_fma_f32 v{tr}, -v{ui}, v{s}, v{tr}")
    E(f"v_fma_f32 v{ti}, v{ui}, v{c}, v{ti}")
    P.free(ur, ui)
    return (tr, ti)

def fft_pass(E, P, N, R, p, sign, vI, src, dst, vBase=None, vRd=None):
    T = N // 8
    nb = 8 // R
    data = {}
    if src[0] == 'lds':
        for m in range(nb):
            for j in range(R):
                r = P.alloc_n(2, 2)
                idx = m * T + j * (N // R)
                assert idx % 8 == 0
                E(f"ds_read_b64 v[{r}:{r+1}], v{vRd} offset:{src[1] + pad(idx) * 8}")
                data[(m, j)] = (r, r + 1)
    else:
        data = dict(src[1])
    tw = {}
    if p > 1:
        for m in range(nb):
            vk = P.alloc()
            if m == 0:
                E(f"v_and_b32 v{vk}, {p-1}, v{vI}")
            else:
                E(f"v_add_u32 v{vk}, {m*T}, v{vI}")
                E(f"v_and_b32 v{vk}, 0x{p-1:x}, v{vk}")
            E(f"v_cvt_f32_u32 v{vk}, v{vk}")
            for j in range(1, R):
                a = P.alloc(); c = P.alloc()
                E(f"v_mul_f32 v{a}, 0x{f2u(sign * j / (p * R)):08x}, v{vk}")
                E(f"v_cos_f32 v{c}, v{a}")
                E(f"v_sin_f32 v{a}, v{a}")
                tw[(m, j)] = (c, a)
            P.free(vk)
    if dst[0] == 'lds':
        wa = []
        for m in range(nb):
            vb = P.alloc(); vt = P.alloc()
            E(f"v_add_u32 v{vb}, {m*T}, v{vI}")
            if p > 1:
                E(f"v_and_b32 v{vt}, 0x{p-1:x}, v{vb}")
                E(f"v_sub_u32 v{vb}, v{vb}, v{vt}")
                E(f"v_lshl_add_u32 v{vb}, v{vb}, {int(math.log2(R))}, v{vt}")
            else:
                E(f"v_lshlrev_b32 v{vb}, {int(math.log2(R))}, v{vb}")
            E(f"v_lshrrev_b32 v{vt}, 3, v{vb}")
            E(f"v_add_u32 v{vb}, v{vb}, v{vt}")
            E(f"v_lshl_add_u32 v{vb}, v{vb}, 3, v{vBase}")
            P.free(vt)
            wa.append(vb)
    if src[0] == 'lds':
        E("s_waitcnt lgkmcnt(0)")
    else:
        E("s_nop 0")
    out = {}
    for m in range(nb):
        regs = []
        for j in range(R):
            u = data[(m, j)]
            if p > 1 and j > 0:
                c, s = tw[(m, j)]
                u = cmul_inplace(E, P, u, c, s)
                P.free(c, s)
            regs.append(u)
        o = dft_regs(E, P, regs, sign)
        for j in range(R):
            out[(m, j)] = o[j]
    if dst[0] == 'lds':
        for m in range(nb):
            offs = None
            for i in range(T):
                b = i + m * T
                k = b % p
                base = (b - k) * R + k
                o = [pad(base + j * p) - pad(base) for j in range(R)]
                if offs is None: offs = o
                assert offs == o, (N, R, p, m, i)
            for j in range(R):
                re, im = out[(m, j)]
                if im == re + 1 and re % 2 == 0:
                    E(f"ds_write_b64 v{wa[m]}, v[{re}:{im}] offset:{dst[1] + offs[j]*8}")
                else:
                    E(f"ds_write2_b32 v{wa[m]}, v{re}, v{im} offset0:{(dst[1] + offs[j]*8)//4} offset1:{(dst[1] + offs[j]*8)//4+1}") if (dst[1] + offs[j]*8)//4+1 < 256 else (
                        E(f"ds_write_b32 v{wa[m]}, v{re} offset:{dst[1] + offs[j]*8}"),
                        E(f"ds_write_b32 v{wa[m]}, v{im} offset:{dst[1] + offs[j]*8 + 4}"))
                P.free(re, im)
            P.free(wa[m])
        return None
    return out
```

```python
from asmlib import *

MB = 1 << 20
XT_OFF = 0
XT_BYTES = 513 * 2048 * 8
WT_OFF = 16 * MB
WT_BYTES = 513 * 2048 * 4
H_OFF = 24 * MB
HN_OFF = 28 * MB
ACT_OFF = 32 * MB
W1T_OFF = 48 * MB
W2T_OFF = 56 * MB
XB = 2048 * 1024 * 2

def srd_from(E, d, ptr, off, nbytes):
    if off:
        E(f"s_add_u32 s{d}, s{ptr}, 0x{off:x}")
        E(f"s_addc_u32 s{d+1}, s{ptr+1}, 0")
    else:
        E(f"s_mov_b32 s{d}, s{ptr}")
        E(f"s_mov_b32 s{d+1}, s{ptr+1}")
    E(f"s_mov_b32 s{d+2}, 0x{nbytes:x}")
    E(f"s_mov_b32 s{d+3}, 0x00020000")

def wave_allsum(E, v, vt, st):
    for msk in (1, 2, 4, 8, 16):
        E(f"ds_swizzle_b32 v{vt}, v{v} offset:0x{(msk << 10) | 0x1f:04x}")
        E("s_waitcnt lgkmcnt(0)")
        E(f"v_add_f32 v{v}, v{v}, v{vt}")
    E("s_nop 1")
    E(f"v_readlane_b32 s{st}, v{v}, 0")
    E(f"v_readlane_b32 s{st+1}, v{v}, 32")
    E("s_nop 3")
    E(f"v_mov_b32 v{v}, s{st}")
    E(f"v_add_f32 v{v}, s{st+1}, v{v}")

def bf16r(E, v):
    E(f"v_cvt_pk_bf16_f32 v{v}, v{v}, v{v}")
    E(f"v_and_b32 v{v}, 0xffff0000, v{v}")

def layernorm16(E, P, xs, st):
    s = P.alloc(); t = P.alloc(); m = P.alloc()
    E(f"v_add_f32 v{s}, v{xs[0]}, v{xs[1]}")
    for r in xs[2:]:
        E(f"v_add_f32 v{s}, v{s}, v{r}")
    wave_allsum(E, s, t, st)
    E(f"v_mul_f32 v{m}, 0x{f2u(1.0/1024):08x}, v{s}")
    E(f"v_sub_f32 v{t}, v{xs[0]}, v{m}")
    E(f"v_mul_f32 v{s}, v{t}, v{t}")
    for r in xs[1:]:
        E(f"v_sub_f32 v{t}, v{r}, v{m}")
        E(f"v_fmac_f32 v{s}, v{t}, v{t}")
    wave_allsum(E, s, t, st)
    E(f"v_mul_f32 v{s}, 0x{f2u(1.0/1024):08x}, v{s}")
    bf16r(E, s)
    E(f"v_add_f32 v{s}, 0x{f2u(1e-5):08x}, v{s}")
    bf16r(E, s)
    E(f"v_sqrt_f32 v{s}, v{s}")
    E("s_nop 0")
    bf16r(E, s)
    E(f"v_rcp_f32 v{s}, v{s}")
    bf16r(E, m)
    for r in xs:
        E(f"v_sub_f32 v{r}, v{r}, v{m}")
        bf16r(E, r)
        E(f"v_mul_f32 v{r}, v{r}, v{s}")
        bf16r(E, r)
    P.free(s, t, m)

def transpose_tile_wave(E, srd_src, srd_dst, ld_src, ld_dst, ntiles_n, s_tile, base_v):
    magic = (1 << 32) // ntiles_n + 1
    E(f"s_mov_b32 s60, 0x{magic:x}")
    E(f"s_mul_hi_u32 s61, s{s_tile}, s60")
    E(f"s_mul_i32 s62, s61, {ntiles_n}")
    E(f"s_sub_u32 s62, s{s_tile}, s62")
    E(f"s_mul_i32 s63, s61, {64*ld_src*2}")
    E(f"s_lshl_b32 s64, s62, 7")
    E(f"s_add_u32 s63, s63, s64")
    E(f"s_mul_i32 s64, s62, {64*ld_dst*2}")
    E(f"s_lshl_b32 s65, s61, 7")
    E(f"s_add_u32 s64, s64, s65")
    vl = base_v; va = base_v + 1; vb = base_v + 2; vs = base_v + 3; vd = base_v + 4
    R0 = base_v + 8
    O0 = base_v + 40
    E(f"v_and_b32 v{vl}, 63, v0")
    E(f"v_and_b32 v{va}, 7, v{vl}")
    E(f"v_lshrrev_b32 v{vb}, 3, v{vl}")
    E(f"v_mul_u32_u24 v{vs}, {8*ld_src*2}, v{vb}")
    E(f"v_lshl_add_u32 v{vs}, v{va}, 4, v{vs}")
    E(f"v_mul_u32_u24 v{vd}, {8*ld_dst*2}, v{va}")
    E(f"v_lshl_add_u32 v{vd}, v{vb}, 4, v{vd}")
    for r in range(8):
        E(f"s_add_u32 s65, s63, {r*ld_src*2}")
        E(f"buffer_load_dwordx4 v[{R0+4*r}:{R0+4*r+3}], v{vs}, s[{srd_src}:{srd_src+3}], s65 offen")
    E("s_mov_b32 s66, 0x05040100")
    E("s_mov_b32 s67, 0x07060302")
    E("s_waitcnt vmcnt(0)")
    for n in range(8):
        for c in range(4):
            sel = 66 if n % 2 == 0 else 67
            E(f"v_perm_b32 v{O0+4*n+c}, v{R0+4*(2*c+1)+(n>>1)}, v{R0+4*(2*c)+(n>>1)}, s{sel}")
    for n in range(8):
        E(f"s_add_u32 s65, s64, {n*ld_dst*2}")
        E(f"buffer_store_dwordx4 v[{O0+4*n}:{O0+4*n+3}], v{vd}, s[{srd_dst}:{srd_dst+3}], s65 offen")

FB1 = pad(1024) * 8
PP1 = 4 * FB1

def gen_k1(E):
    NT = 112
    E.label("k1_kernel")
    E(f"s_cmp_ge_u32 s2, {256+NT}")
    E("s_cbranch_scc1 k1_end")
    E("s_load_dwordx4 s[4:7], s[0:1], 0")
    E("s_load_dwordx2 s[8:9], s[0:1], 16")
    E("s_load_dwordx2 s[10:11], s[0:1], 32")
    E("s_load_dwordx2 s[12:13], s[0:1], 72")
    E("s_waitcnt lgkmcnt(0)")
    E("s_cmp_ge_u32 s2, 256")
    E("s_cbranch_scc1 k1_tr")
    srd_from(E, 16, 4, 0, XB)
    srd_from(E, 20, 6, 0, 2048*513*2)
    srd_from(E, 24, 8, 0, 2048*513*2)
    srd_from(E, 28, 12, XT_OFF, XT_BYTES)
    srd_from(E, 32, 12, WT_OFF, WT_BYTES)
    P = Pool(16, 128)
    E("v_and_b32 v1, 63, v0")
    E("v_lshrrev_b32 v2, 6, v0")
    E("s_lshl_b32 s3, s2, 3")
    E("v_add_u32 v3, s3, v2")
    E("v_lshlrev_b32 v3, 11, v3")
    E("v_lshl_add_u32 v3, v1, 4, v3")
    E("buffer_load_dwordx4 v[8:11], v3, s[16:19], 0 offen")
    E("buffer_load_dwordx4 v[12:15], v3, s[16:19], 0 offen offset:1024")
    E("s_mul_i32 s40, s3, 1026")
    E("v_lshlrev_b32 v4, 1, v0")
    wr = [P.alloc() for _ in range(8)]
    wi = [P.alloc() for _ in range(8)]
    for r in range(8):
        E(f"s_add_u32 s41, s40, {r*1026}")
        E(f"buffer_load_ushort v{wr[r]}, v4, s[20:23], s41 offen")
        E(f"buffer_load_ushort v{wi[r]}, v4, s[24:27], s41 offen")
    E("s_waitcnt vmcnt(16)")
    xs = [P.alloc() for _ in range(16)]
    for q in range(8):
        E(f"v_lshlrev_b32 v{xs[2*q]}, 16, v{8+q}")
        E(f"v_and_b32 v{xs[2*q+1]}, 0xffff0000, v{8+q}")
    layernorm16(E, P, xs, 42)
    E("v_lshrrev_b32 v5, 1, v2")
    E(f"v_mul_u32_u24 v5, {FB1}, v5")
    E("v_and_b32 v6, 1, v2")
    E("v_lshl_add_u32 v5, v6, 2, v5")
    E("v_mul_u32_u24 v6, 72, v1")
    E("v_add_u32 v5, v5, v6")
    for e in range(8):
        E(f"ds_write_b32 v5, v{xs[e]} offset:{e*8}")
        E(f"ds_write_b32 v5, v{xs[8+e]} offset:{pad(512)*8 + e*8}")
    P.free(*xs)
    E("s_waitcnt vmcnt(0)")
    wq = P.alloc_n(8, 4)
    for r in range(8):
        E(f"v_lshl_or_b32 v{wq+r}, v{wi[r]}, 16, v{wr[r]}")
    E("v_lshlrev_b32 v4, 13, v0")
    E("s_lshl_b32 s41, s3, 2")
    E(f"buffer_store_dwordx4 v[{wq}:{wq+3}], v4, s[32:35], s41 offen")
    E(f"buffer_store_dwordx4 v[{wq+4}:{wq+7}], v4, s[32:35], s41 offen offset:16")
    E("v_cmp_gt_u32 vcc, 8, v0")
    E("s_and_saveexec_b64 s[44:45], vcc")
    E("s_cbranch_execz k1_skip512")
    E("v_mul_u32_u24 v4, 1026, v0")
    E("v_add_u32 v4, 1024, v4")
    E(f"buffer_load_ushort v{wr[0]}, v4, s[20:23], s40 offen")
    E(f"buffer_load_ushort v{wi[0]}, v4, s[24:27], s40 offen")
    E("v_lshlrev_b32 v4, 2, v0")
    E(f"v_add_u32 v4, 0x{512*8192:x}, v4")
    E("s_waitcnt vmcnt(0)")
    E(f"v_lshl_or_b32 v{wr[0]}, v{wi[0]}, 16, v{wr[0]}")
    E(f"buffer_store_dword v{wr[0]}, v4, s[32:35], s41 offen")
    E.label("k1_skip512")
    E("s_or_b64 exec, exec, s[44:45]")
    P.free(*wr); P.free(*wi); P.free_n(wq, 8)
    vI = P.alloc(); vBase = P.alloc(); vRd = P.alloc()
    E(f"v_and_b32 v{vI}, 127, v0")
    E(f"v_lshrrev_b32 v{vBase}, 7, v0")
    E(f"v_mul_u32_u24 v{vBase}, {FB1}, v{vBase}")
    E(f"v_lshrrev_b32 v{vRd}, 3, v{vI}")
    E(f"v_add_u32 v{vRd}, v{vRd}, v{vI}")
    E(f"v_lshl_add_u32 v{vRd}, v{vRd}, 3, v{vBase}")
    E("s_waitcnt lgkmcnt(0)")
    E("s_barrier")
    p = 1
    cur = 0
    for R in (8, 8, 8, 2):
        fft_pass(E, P, 1024, R, p, -1, vI, ('lds', cur * PP1), ('lds', (1 - cur) * PP1), vBase, vRd)
        E("s_waitcnt lgkmcnt(0)")
        E("s_barrier")
        cur = 1 - cur
        p *= R
    vF = P.alloc(); vK = P.alloc(); vA = P.alloc(); vB = P.alloc(); vG = P.alloc(); vt = P.alloc()
    E(f"v_and_b32 v{vF}, 3, v0")
    E(f"v_lshrrev_b32 v{vK}, 2, v0")
    E(f"v_mul_u32_u24 v{vF}, {FB1}, v{vF}")
    E(f"v_lshrrev_b32 v{vt}, 3, v{vK}")
    E(f"v_add_u32 v{vt}, v{vt}, v{vK}")
    E(f"v_lshl_add_u32 v{vA}, v{vt}, 3, v{vF}")
    E(f"v_lshlrev_b32 v{vG}, 14, v{vK}")
    E(f"v_and_b32 v{vt}, 3, v0")
    E(f"v_lshl_add_u32 v{vG}, v{vt}, 4, v{vG}")
    E("s_lshl_b32 s41, s3, 3")
    def sep(m, last=False):
        E(f"v_add_u32 v{vt}, {128*m}, v{vK}")
        E(f"v_sub_u32 v{vt}, 1024, v{vt}")
        E(f"v_and_b32 v{vt}, 1023, v{vt}")
        E(f"v_lshrrev_b32 v{vB}, 3, v{vt}")
        E(f"v_add_u32 v{vt}, v{vt}, v{vB}")
        E(f"v_lshl_add_u32 v{vB}, v{vt}, 3, v{vF}")
        z = P.alloc_n(2, 2); y = P.alloc_n(2, 2); o = P.alloc_n(4, 4)
        E(f"ds_read_b64 v[{z}:{z+1}], v{vA} offset:{cur*PP1 + pad(128*m)*8}")
        E(f"ds_read_b64 v[{y}:{y+1}], v{vB} offset:{cur*PP1}")
        E("s_waitcnt lgkmcnt(0)")
        E(f"v_add_f32 v{o}, v{z}, v{y}")
        E(f"v_sub_f32 v{o+1}, v{z+1}, v{y+1}")
        E(f"v_add_f32 v{o+2}, v{z+1}, v{y+1}")
        E(f"v_sub_f32 v{o+3}, v{y}, v{z}")
        E(f"s_add_u32 s42, s41, {128*m*16384}")
        E(f"buffer_store_dwordx4 v[{o}:{o+3}], v{vG}, s[28:31], s42 offen")
        E("s_nop 1")
        P.free_n(z, 2); P.free_n(y, 2); P.free_n(o, 4)
    for m in range(4):
        sep(m)
    E("v_cmp_gt_u32 vcc, 4, v0")
    E("s_and_saveexec_b64 s[44:45], vcc")
    E("s_cbranch_execz k1_end")
    sep(4)
    E("s_branch k1_end")
    E.label("k1_tr")
    srd_from(E, 16, 10, 0, 1024*3584*2)
    srd_from(E, 20, 12, W1T_OFF, 1024*3584*2)
    E("v_lshrrev_b32 v1, 6, v0")
    E("s_nop 0")
    E("v_readfirstlane_b32 s40, v1")
    E("s_sub_u32 s41, s2, 256")
    E("s_lshl_b32 s41, s41, 3")
    E("s_add_u32 s41, s41, s40")
    transpose_tile_wave(E, 16, 20, 3584, 1024, 56, 41, 8)
    E.label("k1_end")
    E("s_endpgm")
    return (256 + NT, 512, 2 * PP1)

FB2 = pad(2048) * 8

def gen_k2(E):
    NT = 224
    E.label("k2_kernel")
    E(f"s_cmp_ge_u32 s2, {513+NT}")
    E("s_cbranch_scc1 k2_end")
    E("s_load_dwordx2 s[10:11], s[0:1], 48")
    E("s_load_dwordx2 s[12:13], s[0:1], 72")
    E("s_waitcnt lgkmcnt(0)")
    E("s_cmp_ge_u32 s2, 513")
    E("s_cbranch_scc1 k2_tr")
    srd_from(E, 28, 12, XT_OFF, XT_BYTES)
    srd_from(E, 32, 12, WT_OFF, WT_BYTES)
    P = Pool(8, 128)
    vI = 0
    vBase = P.alloc(); vRd = P.alloc(); vG = P.alloc()
    E("s_lshl_b32 s3, s2, 14")
    E("s_lshl_b32 s4, s2, 13")
    E(f"v_lshlrev_b32 v{vG}, 3, v0")
    data = {}
    for j in range(8):
        r = P.alloc_n(2, 2)
        E(f"s_add_u32 s5, s3, {j*2048}")
        E(f"buffer_load_dwordx2 v[{r}:{r+1}], v{vG}, s[28:31], s5 offen")
        data[(0, j)] = (r, r + 1)
    wreg = {}
    vW = P.alloc()
    E(f"v_lshlrev_b32 v{vW}, 2, v0")
    for m in range(2):
        for j in range(4):
            w = P.alloc()
            off = (m * 256 + j * 512) * 4
            if off < 4096:
                E(f"buffer_load_dword v{w}, v{vW}, s[32:35], s4 offen offset:{off}")
            else:
                E(f"s_add_u32 s5, s4, {off}")
                E(f"buffer_load_dword v{w}, v{vW}, s[32:35], s5 offen")
            wreg[(m, j)] = w
    P.free(vW)
    E(f"v_mov_b32 v{vBase}, 0")
    E(f"v_lshrrev_b32 v{vRd}, 3, v0")
    E(f"v_add_u32 v{vRd}, v{vRd}, v0")
    E(f"v_lshlrev_b32 v{vRd}, 3, v{vRd}")
    E("s_waitcnt vmcnt(8)")
    def bar():
        E("s_waitcnt lgkmcnt(0)")
        E("s_barrier")
    fft_pass(E, P, 2048, 8, 1, -1, vI, ('regs', data), ('lds', 0), vBase, vRd); bar()
    fft_pass(E, P, 2048, 8, 8, -1, vI, ('lds', 0), ('lds', FB2), vBase, vRd); bar()
    fft_pass(E, P, 2048, 8, 64, -1, vI, ('lds', FB2), ('lds', 0), vBase, vRd); bar()
    out = fft_pass(E, P, 2048, 4, 512, -1, vI, ('lds', 0), ('regs',), vBase, vRd)
    E("s_waitcnt vmcnt(0)")
    scale = f2u(1.0 / (2048 * 1024 * 2))
    for key in out:
        w = wreg[key]
        c = P.alloc()
        E(f"v_lshlrev_b32 v{c}, 16, v{w}")
        E(f"v_and_b32 v{w}, 0xffff0000, v{w}")
        E(f"v_mul_f32 v{c}, 0x{scale:08x}, v{c}")
        E(f"v_mul_f32 v{w}, 0x{scale:08x}, v{w}")
        out[key] = cmul_inplace(E, P, out[key], c, w)
        P.free(c, w)
    fft_pass(E, P, 2048, 4, 1, +1, vI, ('regs', out), ('lds', FB2), vBase, vRd); bar()
    fft_pass(E, P, 2048, 8, 4, +1, vI, ('lds', FB2), ('lds', 0), vBase, vRd); bar()
    fft_pass(E, P, 2048, 8, 32, +1, vI, ('lds', 0), ('lds', FB2), vBase, vRd); bar()
    out = fft_pass(E, P, 2048, 8, 256, +1, vI, ('lds', FB2), ('regs',), vBase, vRd)
    for j in range(8):
        re, im = out[(0, j)]
        E(f"s_add_u32 s5, s3, {j*2048}")
        if im == re + 1 and re % 2 == 0:
            E(f"buffer_store_dwordx2 v[{re}:{im}], v{vG}, s[28:31], s5 offen")
        else:
            E(f"buffer_store_dword v{re}, v{vG}, s[28:31], s5 offen")
            E(f"buffer_store_dword v{im}, v{vG}, s[28:31], s5 offen offset:4")
    E("s_branch k2_end")
    E.label("k2_tr")
    srd_from(E, 16, 10, 0, 1024*3584*2)
    srd_from(E, 20, 12, W2T_OFF, 1024*3584*2)
    E("v_lshrrev_b32 v1, 6, v0")
    E("s_nop 0")
    E("v_readfirstlane_b32 s40, v1")
    E("s_sub_u32 s41, s2, 513")
    E("s_lshl_b32 s41, s41, 2")
    E("s_add_u32 s41, s41, s40")
    transpose_tile_wave(E, 16, 20, 1024, 3584, 16, 41, 8)
    E.label("k2_end")
    E("s_endpgm")
    return (513 + NT, 256, 2 * FB2)

def gen_k3(E):
    E.label("k3_kernel")
    E("s_cmp_ge_u32 s2, 256")
    E("s_cbranch_scc1 k3_end")
    E("s_load_dwordx2 s[4:5], s[0:1], 0")
    E("s_load_dwordx2 s[12:13], s[0:1], 72")
    E("s_waitcnt lgkmcnt(0)")
    srd_from(E, 16, 4, 0, XB)
    srd_from(E, 28, 12, XT_OFF, XT_BYTES)
    srd_from(E, 20, 12, H_OFF, XB)
    srd_from(E, 24, 12, HN_OFF, XB)
    P = Pool(16, 128)
    RAW = PP1
    E("s_lshl_b32 s3, s2, 3")
    E("v_and_b32 v1, 63, v0")
    E("v_lshrrev_b32 v2, 6, v0")
    E("v_add_u32 v3, s3, v2")
    E("v_lshlrev_b32 v3, 11, v3")
    E("v_lshl_add_u32 v3, v1, 4, v3")
    E("buffer_load_dwordx4 v[8:11], v3, s[16:19], 0 offen")
    E("buffer_load_dwordx4 v[12:15], v3, s[16:19], 0 offen offset:1024")
    vG = P.alloc(); vL = P.alloc(); vt = P.alloc()
    E(f"v_lshrrev_b32 v{vG}, 2, v0")
    E(f"v_lshlrev_b32 v{vG}, 14, v{vG}")
    E(f"v_and_b32 v{vt}, 3, v0")
    E(f"v_lshl_add_u32 v{vG}, v{vt}, 4, v{vG}")
    E(f"v_lshlrev_b32 v{vL}, 4, v0")
    E(f"v_add_u32 v{vL}, {RAW}, v{vL}")
    E("s_lshl_b32 s41, s3, 3")
    rr = [P.alloc_n(4, 4) for _ in range(5)]
    for m in range(4):
        E(f"s_add_u32 s42, s41, {128*m*16384}")
        E(f"buffer_load_dwordx4 v[{rr[m]}:{rr[m]+3}], v{vG}, s[28:31], s42 offen")
    E("v_cmp_gt_u32 vcc, 4, v0")
    E("s_and_saveexec_b64 s[44:45], vcc")
    E("s_cbranch_execz k3_s512")
    E(f"s_add_u32 s42, s41, {512*16384}")
    E(f"buffer_load_dwordx4 v[{rr[4]}:{rr[4]+3}], v{vG}, s[28:31], s42 offen")
    E("s_waitcnt vmcnt(0)")
    E(f"ds_write_b128 v{vL}, v[{rr[4]}:{rr[4]+3}] offset:{4*8192}")
    E.label("k3_s512")
    E("s_or_b64 exec, exec, s[44:45]")
    E("s_waitcnt vmcnt(0)")
    for m in range(4):
        E(f"ds_write_b128 v{vL}, v[{rr[m]}:{rr[m]+3}] offset:{m*8192}")
    for r in rr: P.free_n(r, 4)
    P.free(vG, vL, vt)
    vI = P.alloc(); vBase = P.alloc(); vRd = P.alloc(); vF = P.alloc()
    E(f"v_and_b32 v{vI}, 127, v0")
    E(f"v_lshrrev_b32 v{vF}, 7, v0")
    E(f"v_mul_u32_u24 v{vBase}, {FB1}, v{vF}")
    E(f"v_lshrrev_b32 v{vRd}, 3, v{vI}")
    E(f"v_add_u32 v{vRd}, v{vRd}, v{vI}")
    E(f"v_lshl_add_u32 v{vRd}, v{vRd}, 3, v{vBase}")
    vP = P.alloc(); vN = P.alloc()
    E(f"v_lshlrev_b32 v{vP}, 6, v{vI}")
    E(f"v_lshl_add_u32 v{vP}, v{vF}, 4, v{vP}")
    E(f"v_sub_u32 v{vN}, 128, v{vI}")
    E(f"v_lshlrev_b32 v{vN}, 6, v{vN}")
    E(f"v_lshl_add_u32 v{vN}, v{vF}, 4, v{vN}")
    E("s_waitcnt lgkmcnt(0)")
    E("s_barrier")
    raw = []
    for j in range(8):
        r = P.alloc_n(4, 4)
        if j < 4:
            E(f"ds_read_b128 v[{r}:{r+3}], v{vP} offset:{RAW + j*8192}")
        else:
            E(f"ds_read_b128 v[{r}:{r+3}], v{vN} offset:{RAW + (7-j)*8192}")
        raw.append(r)
    E(f"v_cmp_ne_u32 vcc, 0, v{vI}")
    E("s_waitcnt lgkmcnt(0)")
    for j in (0, 4):
        r = raw[j]
        E(f"v_cndmask_b32 v{r+1}, 0, v{r+1}, vcc")
        E(f"v_cndmask_b32 v{r+3}, 0, v{r+3}, vcc")
    data = {}
    for j in range(8):
        r = raw[j]
        z = P.alloc_n(2, 2)
        if j < 4:
            E(f"v_sub_f32 v{z}, v{r}, v{r+3}")
            E(f"v_add_f32 v{z+1}, v{r+1}, v{r+2}")
        else:
            E(f"v_add_f32 v{z}, v{r}, v{r+3}")
            E(f"v_sub_f32 v{z+1}, v{r+2}, v{r+1}")
        P.free_n(r, 4)
        data[(0, j)] = (z, z + 1)
    P.free(vP, vN)
    def bar():
        E("s_waitcnt lgkmcnt(0)")
        E("s_barrier")
    fft_pass(E, P, 1024, 8, 1, +1, vI, ('regs', data), ('lds', 0), vBase, vRd); bar()
    fft_pass(E, P, 1024, 8, 8, +1, vI, ('lds', 0), ('lds', PP1), vBase, vRd); bar()
    fft_pass(E, P, 1024, 8, 64, +1, vI, ('lds', PP1), ('lds', 0), vBase, vRd); bar()
    fft_pass(E, P, 1024, 2, 512, +1, vI, ('lds', 0), ('lds', PP1), vBase, vRd); bar()
    E("v_lshrrev_b32 v5, 1, v2")
    E(f"v_mul_u32_u24 v5, {FB1}, v5")
    E("v_and_b32 v6, 1, v2")
    E("v_lshl_add_u32 v5, v6, 2, v5")
    E("v_mul_u32_u24 v6, 72, v1")
    E("v_add_u32 v5, v5, v6")
    ys = [P.alloc() for _ in range(16)]
    for e in range(8):
        E(f"ds_read_b32 v{ys[e]}, v5 offset:{PP1 + e*8}")
        E(f"ds_read_b32 v{ys[8+e]}, v5 offset:{PP1 + pad(512)*8 + e*8}")
    E("s_waitcnt vmcnt(0) lgkmcnt(0)")
    xs = [P.alloc() for _ in range(16)]
    for q in range(8):
        E(f"v_lshlrev_b32 v{xs[2*q]}, 16, v{8+q}")
        E(f"v_and_b32 v{xs[2*q+1]}, 0xffff0000, v{8+q}")
    for e in range(16):
        bf16r(E, ys[e])
        E(f"v_add_f32 v{xs[e]}, v{xs[e]}, v{ys[e]}")
        bf16r(E, xs[e])
    for q in range(8):
        E(f"v_cvt_pk_bf16_f32 v{8+q}, v{xs[2*q]}, v{xs[2*q+1]}")
    E("buffer_store_dwordx4 v[8:11], v3, s[20:23], 0 offen")
    E("buffer_store_dwordx4 v[12:15], v3, s[20:23], 0 offen offset:1024")
    layernorm16(E, P, xs, 42)
    o = P.alloc_n(8, 4)
    for q in range(8):
        E(f"v_cvt_pk_bf16_f32 v{o+q}, v{xs[2*q]}, v{xs[2*q+1]}")
    E(f"buffer_store_dwordx4 v[{o}:{o+3}], v3, s[24:27], 0 offen")
    E(f"buffer_store_dwordx4 v[{o+4}:{o+7}], v3, s[24:27], 0 offen offset:1024")
    E.label("k3_end")
    E("s_endpgm")
    return (256, 512, 2 * PP1)
```

```python
from asmlib import *
from gen_fft import srd_from, H_OFF, HN_OFF, ACT_OFF, W1T_OFF, W2T_OFF, XB, bf16r

def gen_gemm(E, name, TM, TN, K, M, N, A_off, B_off, xcd_tm, xcd_tn, epi):
    ld2 = K * 2
    NK = K // 64
    SS = (TM + TN) * 128
    WTM, WTN = TM // 2, TN // 2
    NT, NU = WTM // 16, WTN // 16
    GA, GB = TM // 32, TN // 32
    ND = GA + GB
    ntm, ntn = M // TM, N // TN
    nwg = ntm * ntn
    assert nwg == 256
    E.label(name)
    E(f"s_cmp_ge_u32 s2, {nwg}")
    E(f"s_cbranch_scc1 {name}_end")
    E("s_load_dwordx2 s[4:5], s[0:1], 40")
    E("s_load_dwordx2 s[6:7], s[0:1], 56")
    E("s_load_dwordx2 s[12:13], s[0:1], 72")
    gx = ntn // xcd_tn
    E("s_and_b32 s40, s2, 7")
    E("s_lshr_b32 s41, s2, 3")
    E(f"s_lshr_b32 s42, s40, {int(math.log2(gx))}")
    E(f"s_and_b32 s43, s40, {gx-1}")
    E(f"s_lshr_b32 s44, s41, {int(math.log2(xcd_tn))}")
    E(f"s_and_b32 s45, s41, {xcd_tn-1}")
    E(f"s_lshl_b32 s42, s42, {int(math.log2(xcd_tm))}")
    E("s_add_u32 s42, s42, s44")
    E(f"s_lshl_b32 s43, s43, {int(math.log2(xcd_tn))}")
    E("s_add_u32 s43, s43, s45")
    E("v_lshrrev_b32 v1, 6, v0")
    E("v_and_b32 v2, 63, v0")
    E("s_nop 0")
    E("v_readfirstlane_b32 s46, v1")
    E("s_waitcnt lgkmcnt(0)")
    srd_from(E, 16, 12, A_off, M * ld2)
    srd_from(E, 20, 12, B_off, N * ld2)
    E("v_lshrrev_b32 v4, 3, v2")
    E("v_and_b32 v5, 7, v2")
    E("v_xor_b32 v5, v5, v4")
    E(f"v_mul_u32_u24 v3, {ld2}, v4")
    E("v_lshl_add_u32 v3, v5, 4, v3")
    E(f"s_mul_i32 s47, s42, {TM}")
    E("s_lshl_b32 s49, s46, 3")
    E("s_add_u32 s47, s47, s49")
    E(f"s_mul_i32 s47, s47, {ld2}")
    E(f"s_mul_i32 s48, s43, {TN}")
    E("s_add_u32 s48, s48, s49")
    E(f"s_mul_i32 s48, s48, {ld2}")
    E("s_lshl_b32 s50, s46, 10")
    def dma(stage_sgpr):
        for i in range(GA):
            E(f"s_add_u32 s51, s47, {i*32*ld2}")
            E(f"s_add_u32 m0, s{stage_sgpr}, {i*4096}")
            E("s_nop 0")
            E(f"buffer_load_dwordx4 v3, s[16:19], s51 offen lds")
        for i in range(GB):
            E(f"s_add_u32 s51, s48, {i*32*ld2}")
            E(f"s_add_u32 m0, s{stage_sgpr}, {TM*128 + i*4096}")
            E("s_nop 0")
            E(f"buffer_load_dwordx4 v3, s[20:23], s51 offen lds")
        E("s_add_u32 s47, s47, 128")
        E("s_add_u32 s48, s48, 128")
    for st in range(3):
        E(f"s_add_u32 s{52+st}, s50, {st*SS}")
        E(f"s_mov_b32 s{55+st}, {st*SS}")
    dma(52); dma(53); dma(54)
    E("v_lshrrev_b32 v4, 4, v2")
    E("v_and_b32 v5, 7, v2")
    E("v_xor_b32 v4, v4, v5")
    E("v_and_b32 v5, 15, v2")
    E("v_lshlrev_b32 v5, 7, v5")
    E("v_lshl_add_u32 v4, v4, 4, v5")
    E("s_lshr_b32 s58, s46, 1")
    E("s_and_b32 s59, s46, 1")
    E(f"s_mul_i32 s60, s58, {WTM*128}")
    E(f"s_mul_i32 s61, s59, {WTN*128}")
    E(f"s_add_u32 s61, s61, {TM*128}")
    E("v_add_u32 v6, s60, v4")
    E("v_xor_b32 v7, 64, v6")
    E("v_add_u32 v8, s61, v4")
    E("v_xor_b32 v9, 64, v8")
    F0A = 16; F0B = F0A + 4 * NT; F1A = F0B + 4 * NU; F1B = F1A + 4 * NT; FEND = F1B + 4 * NU
    NACC = NT * NU * 4
    for r in range(NACC):
        E(f"v_accvgpr_write_b32 a{r}, 0")
    def read_frags(FA, FB, va, vb):
        for t in range(NT):
            E(f"ds_read_b128 v[{FA+4*t}:{FA+4*t+3}], v{va} offset:{t*2048}")
        for u in range(NU):
            E(f"ds_read_b128 v[{FB+4*u}:{FB+4*u+3}], v{vb} offset:{u*2048}")
    def mfmas(FA, FB):
        for t in range(NT):
            for u in range(NU):
                a = (t * NU + u) * 4
                E(f"v_mfma_f32_16x16x32_bf16 a[{a}:{a+3}], v[{FB+4*u}:{FB+4*u+3}], v[{FA+4*t}:{FA+4*t+3}], a[{a}:{a+3}]")
    NF = NT + NU
    E(f"s_waitcnt vmcnt({2*ND})")
    E("s_barrier")
    E("v_add_u32 v10, s55, v6")
    E("v_add_u32 v12, s55, v8")
    read_frags(F0A, F0B, 10, 12)
    E("v_add_u32 v11, s55, v7")
    E("v_add_u32 v13, s55, v9")
    def body(mode):
        read_frags(F1A, F1B, 11, 13)
        E(f"s_waitcnt lgkmcnt({NF})")
        mfmas(F0A, F0B)
        if mode != 'last':
            E(f"s_waitcnt vmcnt({ND if mode in ('main','nodma1') else 0}) lgkmcnt(0)")
            E("s_barrier")
            if mode == 'main':
                dma(52)
            E("s_mov_b32 s62, s52"); E("s_mov_b32 s52, s53"); E("s_mov_b32 s53, s54"); E("s_mov_b32 s54, s62")
            E("s_mov_b32 s62, s55"); E("s_mov_b32 s55, s56"); E("s_mov_b32 s56, s57"); E("s_mov_b32 s57, s62")
            E("v_add_u32 v10, s55, v6")
            E("v_add_u32 v12, s55, v8")
            read_frags(F0A, F0B, 10, 12)
            E("v_add_u32 v11, s55, v7")
            E("v_add_u32 v13, s55, v9")
        else:
            E("s_waitcnt lgkmcnt(0)")
        mfmas(F1A, F1B)
    E(f"s_mov_b32 s63, {NK-3}")
    E.label(f"{name}_loop")
    body('main')
    E("s_sub_u32 s63, s63, 1")
    E("s_cmp_lg_u32 s63, 0")
    E(f"s_cbranch_scc1 {name}_loop")
    body('nodma1')
    body('nodma0')
    body('last')
    E("s_nop 15")
    E("s_nop 15")
    E(f"s_mul_i32 s60, s42, {TM}")
    E(f"s_mul_i32 s61, s58, {WTM}")
    E("s_add_u32 s60, s60, s61")
    E(f"s_mul_i32 s61, s43, {TN}")
    E(f"s_mul_i32 s62, s59, {WTN}")
    E("s_add_u32 s61, s61, s62")
    E("v_and_b32 v4, 15, v2")
    E("v_add_u32 v4, s60, v4")
    E("v_lshrrev_b32 v5, 4, v2")
    E("v_lshlrev_b32 v5, 2, v5")
    E("v_add_u32 v5, s61, v5")
    P = Pool(16, 128)
    if epi == 'mish':
        srd_from(E, 24, 4, 0, 3584 * 2)
        srd_from(E, 28, 12, ACT_OFF, M * N * 2)
        E("v_lshlrev_b32 v6, 1, v5")
        breg = []
        for u in range(NU):
            b = P.alloc_n(2, 2)
            E(f"buffer_load_dwordx2 v[{b}:{b+1}], v6, s[24:27], 0 offen offset:{u*32}")
            breg.append(b)
        E(f"v_mul_u32_u24 v7, {N*2}, v4")
        E("v_add_u32 v7, v7, v6")
        E("s_waitcnt vmcnt(0)")
        bf = []
        for u in range(NU):
            r4 = [P.alloc() for _ in range(4)]
            b = breg[u]
            E(f"v_lshlrev_b32 v{r4[0]}, 16, v{b}")
            E(f"v_and_b32 v{r4[1]}, 0xffff0000, v{b}")
            E(f"v_lshlrev_b32 v{r4[2]}, 16, v{b+1}")
            E(f"v_and_b32 v{r4[3]}, 0xffff0000, v{b+1}")
            P.free_n(b, 2)
            bf.append(r4)
        LOG2E = f2u(1.4426950408889634)
        for t in range(NT):
            E(f"s_mov_b32 s62, {t*16*N*2}")
            for u in range(NU):
                a = (t * NU + u) * 4
                x = [P.alloc() for _ in range(4)]
                e = [P.alloc() for _ in range(4)]
                for r in range(4):
                    E(f"v_accvgpr_read_b32 v{x[r]}, a{a+r}")
                for r in range(4):
                    bf16r(E, x[r])
                    E(f"v_add_f32 v{x[r]}, v{x[r]}, v{bf[u][r]}")
                    bf16r(E, x[r])
                    E(f"v_min_f32 v{e[r]}, 0x41a00000, v{x[r]}")
                    E(f"v_mul_f32 v{e[r]}, 0x{LOG2E:08x}, v{e[r]}")
                for r in range(4):
                    E(f"v_exp_f32 v{e[r]}, v{e[r]}")
                n_ = [P.alloc() for _ in range(4)]
                for r in range(4):
                    E(f"v_add_f32 v{n_[r]}, 2.0, v{e[r]}")
                    E(f"v_mul_f32 v{n_[r]}, v{n_[r]}, v{e[r]}")
                    E(f"v_add_f32 v{e[r]}, 2.0, v{n_[r]}")
                for r in range(4):
                    E(f"v_rcp_f32 v{e[r]}, v{e[r]}")
                for r in range(4):
                    E(f"v_mul_f32 v{n_[r]}, v{n_[r]}, v{x[r]}")
                for r in range(4):
                    E(f"v_mul_f32 v{n_[r]}, v{n_[r]}, v{e[r]}")
                o = P.alloc_n(2, 2)
                E(f"v_cvt_pk_bf16_f32 v{o}, v{n_[0]}, v{n_[1]}")
                E(f"v_cvt_pk_bf16_f32 v{o+1}, v{n_[2]}, v{n_[3]}")
                E(f"buffer_store_dwordx2 v[{o}:{o+1}], v7, s[28:31], s62 offen offset:{u*32}")
                P.free(*x); P.free(*e); P.free(*n_); P.free_n(o, 2)
    else:
        srd_from(E, 24, 12, H_OFF, XB)
        srd_from(E, 28, 6, 0, XB)
        E(f"v_mul_u32_u24 v7, {N*2}, v4")
        E("v_lshl_add_u32 v7, v5, 1, v7")
        hs = {}
        for t in range(NT):
            E(f"s_mov_b32 s62, {t*16*N*2}")
            for u in range(NU):
                hreg = P.alloc_n(2, 2)
                E(f"buffer_load_dwordx2 v[{hreg}:{hreg+1}], v7, s[24:27], s62 offen offset:{u*32}")
                hs[(t, u)] = hreg
        E("s_waitcnt vmcnt(0)")
        for t in range(NT):
            E(f"s_mov_b32 s62, {t*16*N*2}")
            for u in range(NU):
                a = (t * NU + u) * 4
                hreg = hs[(t, u)]
                x = [P.alloc() for _ in range(4)]
                hh = [P.alloc() for _ in range(4)]
                for r in range(4):
                    E(f"v_accvgpr_read_b32 v{x[r]}, a{a+r}")
                E(f"v_lshlrev_b32 v{hh[0]}, 16, v{hreg}")
                E(f"v_and_b32 v{hh[1]}, 0xffff0000, v{hreg}")
                E(f"v_lshlrev_b32 v{hh[2]}, 16, v{hreg+1}")
                E(f"v_and_b32 v{hh[3]}, 0xffff0000, v{hreg+1}")
                for r in range(4):
                    bf16r(E, x[r])
                    E(f"v_add_f32 v{x[r]}, v{x[r]}, v{hh[r]}")
                E(f"v_cvt_pk_bf16_f32 v{hreg}, v{x[0]}, v{x[1]}")
                E(f"v_cvt_pk_bf16_f32 v{hreg+1}, v{x[2]}, v{x[3]}")
                E(f"buffer_store_dwordx2 v[{hreg}:{hreg+1}], v7, s[28:31], s62 offen offset:{u*32}")
                P.free(*x); P.free(*hh)
    E.label(f"{name}_end")
    E("s_endpgm")
    return (nwg, 256, 3 * SS)

def kernels():
    k4 = lambda E: gen_gemm(E, "k4_kernel", 128, 224, 1024, 2048, 3584, HN_OFF, W1T_OFF, 8, 4, 'mish')
    k5 = lambda E: gen_gemm(E, "k5_kernel", 128, 64, 3584, 2048, 1024, ACT_OFF, W2T_OFF, 4, 8, 'res')
    return [("k4_kernel", k4, 128 + 112, 102, 128), ("k5_kernel", k5, 128 + 32, 102, 128)]
```

```python
import sys
from asmlib import *
import gen_fft2 as gen_fft

HEADER = open('sequential_preLN__spectral_gfnet__dense_activation_mish__prompt.s.ref').read().split('; Override')[0]

def build(kernels, out):
    E = Asm()
    launches = []
    body = Asm()
    for name, fn, nv, ns, acc in kernels:
        body.raw(".p2align 8")
        body.raw(f".globl {name}")
        body.raw(f".type {name},@function")
        g, b, lds = fn(body)
        launches.append((name, g, b, lds, nv, ns, acc))
    txt = HEADER
    for name, g, b, lds, nv, ns, acc in launches:
        txt += f"; @launch kernel={name} grid=({g},1,1) block=({b},1,1) lds={lds}\n"
    txt += '.amdgcn_target "amdgcn-amd-amdhsa--gfx950"\n.text\n'
    txt += body.text()
    txt += '.section .rodata,"a"\n'
    seen = set()
    for name, g, b, lds, nv, ns, acc in launches:
        if name in seen: continue
        seen.add(name)
        txt += f""".p2align 6
.amdhsa_kernel {name}
  .amdhsa_next_free_vgpr {nv}
  .amdhsa_next_free_sgpr {ns}
  .amdhsa_accum_offset {acc}
  .amdhsa_group_segment_fixed_size 0
  .amdhsa_kernarg_size 80
  .amdhsa_user_sgpr_count 2
  .amdhsa_user_sgpr_kernarg_segment_ptr 1
  .amdhsa_system_sgpr_workgroup_id_x 1
.end_amdhsa_kernel
"""
    open(out, 'w').write(txt)

if __name__ == '__main__':
    out = sys.argv[1] if len(sys.argv) > 1 else 'out.s'
    ks = [("k1_kernel", gen_fft.gen_k1, 128, 102, 128),
          ("k2_kernel", gen_fft.gen_k2, 128, 102, 128),
          ("k3_kernel", gen_fft.gen_k3, 128, 102, 128)]
    try:
        import gen_gemm2 as gen_gemm
        ks += gen_gemm.kernels()
    except ImportError:
        pass
    build(ks, out)
```

```python
from asmlib import *

def pr(r): return f"v[{r}:{r+1}]"

def pk_add(E, d, a, b, sub=False):
    E(f"v_pk_add_f32 {pr(d)}, {pr(a)}, {pr(b)}" + (" neg_lo:[0,1] neg_hi:[0,1]" if sub else ""))

def pk_add_rot(E, d, a, b, rot):
    if rot == '-i':
        E(f"v_pk_add_f32 {pr(d)}, {pr(a)}, {pr(b)} op_sel:[0,1] op_sel_hi:[1,0] neg_hi:[0,1]")
    else:
        E(f"v_pk_add_f32 {pr(d)}, {pr(a)}, {pr(b)} op_sel:[0,1] op_sel_hi:[1,0] neg_lo:[0,1]")

def dft_pk(E, P, regs, sign, sC):
    n = len(regs)
    if n == 1:
        return regs
    Ev = dft_pk(E, P, regs[0::2], sign, sC)
    Od = dft_pk(E, P, regs[1::2], sign, sC)
    out = [None] * n
    for k in range(n // 2):
        e = Ev[k]; o = Od[k]
        if k == 0:
            t = P.alloc_n(2, 2)
            pk_add(E, t, e, o, sub=True)
            pk_add(E, e, e, o)
            P.free_n(o, 2)
            out[k] = e; out[k + n // 2] = t
        elif 4 * k == n:
            t = P.alloc_n(2, 2)
            r1, r2 = ('-i', '+i') if sign < 0 else ('+i', '-i')
            pk_add_rot(E, t, e, o, r2)
            pk_add_rot(E, e, e, o, r1)
            P.free_n(o, 2)
            out[k] = e; out[k + n // 2] = t
        elif 8 * k == n or 8 * k == 3 * n:
            a = 1 if 8 * k == n else -1
            b = -1 if sign < 0 else 1
            t = P.alloc_n(2, 2)
            nl0 = 1 if a < 0 else 0; nh0 = 1 if a < 0 else 0
            nl1 = 1 if b > 0 else 0; nh1 = 1 if b < 0 else 0
            E(f"v_pk_add_f32 {pr(t)}, {pr(o)}, {pr(o)} op_sel:[0,1] op_sel_hi:[1,0] neg_lo:[{nl0},{nl1}] neg_hi:[{nh0},{nh1}]")
            E(f"v_pk_fma_f32 {pr(o)}, {pr(t)}, s[{sC}:{sC+1}], {pr(e)} neg_lo:[1,0,0] neg_hi:[1,0,0]")
            E(f"v_pk_fma_f32 {pr(e)}, {pr(t)}, s[{sC}:{sC+1}], {pr(e)}")
            P.free_n(t, 2)
            out[k] = e; out[k + n // 2] = o
        else:
            raise RuntimeError("radix too big")
    return out

def cmul_pk(E, P, u, w, conj=False):
    t = P.alloc_n(2, 2)
    E(f"v_pk_mul_f32 {pr(t)}, {pr(u)}, {pr(w)} op_sel:[0,0] op_sel_hi:[1,0]")
    if not conj:
        E(f"v_pk_fma_f32 {pr(t)}, {pr(u)}, {pr(w)}, {pr(t)} op_sel:[1,1,0] op_sel_hi:[0,1,1] neg_lo:[1,0,0]")
    else:
        E(f"v_pk_fma_f32 {pr(t)}, {pr(u)}, {pr(w)}, {pr(t)} op_sel:[1,1,0] op_sel_hi:[0,1,1] neg_hi:[1,0,0]")
    P.free_n(u, 2)
    return t

def build_table(E, P, N, nthreads, tab_off, vtid):
    per = N // nthreads
    va = P.alloc(); vf = P.alloc()
    E(f"v_lshlrev_b32 v{va}, 3, v{vtid}")
    E(f"v_cvt_f32_u32 v{vf}, v{vtid}")
    for q in range(per):
        c = P.alloc_n(2, 2); t = P.alloc()
        E(f"v_add_f32 v{t}, 0x{f2u(float(q*nthreads)):08x}, v{vf}")
        E(f"v_mul_f32 v{t}, 0x{f2u(-1.0/N):08x}, v{t}")
        E(f"v_cos_f32 v{c}, v{t}")
        E(f"v_sin_f32 v{c+1}, v{t}")
        E("s_nop 0")
        E(f"ds_write_b64 v{va}, {pr(c)} offset:{tab_off + q*nthreads*8}")
        P.free_n(c, 2); P.free(t)
    P.free(va, vf)

def fft_pass(E, P, N, R, p, sign, vI, src, dst, vBase, vRd, tab_off, sC):
    T = N // 8
    nb = 8 // R
    data = {}
    if src[0] == 'lds':
        for m in range(nb):
            for j in range(R):
                r = P.alloc_n(2, 2)
                idx = m * T + j * (N // R)
                assert idx % 8 == 0
                E(f"ds_read_b64 {pr(r)}, v{vRd} offset:{src[1] + pad(idx) * 8}")
                data[(m, j)] = r
    else:
        data = dict(src[1])
    tw = {}
    if p > 1:
        stride = N // (p * R)
        for m in range(nb):
            vk = P.alloc(); va = P.alloc()
            if m == 0:
                E(f"v_and_b32 v{vk}, {p-1}, v{vI}")
            else:
                E(f"v_add_u32 v{vk}, {m*T}, v{vI}")
                E(f"v_and_b32 v{vk}, 0x{p-1:x}, v{vk}")
            E(f"v_mul_u32_u24 v{vk}, {stride*8}, v{vk}")
            for j in range(1, R):
                w = P.alloc_n(2, 2)
                if j == 1:
                    E(f"ds_read_b64 {pr(w)}, v{vk} offset:{tab_off}")
                    cur = vk
                else:
                    E(f"v_add_u32 v{va}, v{cur}, v{vk}")
                    E(f"ds_read_b64 {pr(w)}, v{va} offset:{tab_off}")
                    nv = P.alloc()
                    E(f"v_mov_b32 v{nv}, v{va}") if False else None
                    P.free(nv)
                    cur = va
                tw[(m, j)] = w
            P.free(vk, va)
    if dst[0] == 'lds':
        wa = []
        for m in range(nb):
            vb = P.alloc(); vt = P.alloc()
            E(f"v_add_u32 v{vb}, {m*T}, v{vI}")
            if p > 1:
                E(f"v_and_b32 v{vt}, 0x{p-1:x}, v{vb}")
                E(f"v_sub_u32 v{vb}, v{vb}, v{vt}")
                E(f"v_lshl_add_u32 v{vb}, v{vb}, {int(math.log2(R))}, v{vt}")
            else:
                E(f"v_lshlrev_b32 v{vb}, {int(math.log2(R))}, v{vb}")
            E(f"v_lshrrev_b32 v{vt}, 3, v{vb}")
            E(f"v_add_u32 v{vb}, v{vb}, v{vt}")
            E(f"v_lshl_add_u32 v{vb}, v{vb}, 3, v{vBase}")
            P.free(vt)
            wa.append(vb)
    if src[0] == 'lds' or p > 1:
        E("s_waitcnt lgkmcnt(0)")
    out = {}
    for m in range(nb):
        regs = []
        for j in range(R):
            u = data[(m, j)]
            if p > 1 and j > 0:
                w = tw[(m, j)]
                u = cmul_pk(E, P, u, w, conj=(sign > 0))
                P.free_n(w, 2)
            regs.append(u)
        o = dft_pk(E, P, regs, sign, sC)
        for j in range(R):
            out[(m, j)] = o[j]
    if dst[0] == 'lds':
        for m in range(nb):
            offs = None
            for i in range(T):
                b = i + m * T
                k = b % p
                base = (b - k) * R + k
                o = [pad(base + j * p) - pad(base) for j in range(R)]
                if offs is None: offs = o
                assert offs == o, (N, R, p, m, i)
            for j in range(R):
                r = out[(m, j)]
                E(f"ds_write_b64 v{wa[m]}, {pr(r)} offset:{dst[1] + offs[j]*8}")
                P.free_n(r, 2)
            P.free(wa[m])
        return None
    return out
```

```python
from asmlib import *
from fftlib import pr, pk_add, pk_add_rot, cmul_pk

C1 = math.cos(math.pi / 8); S1 = math.sin(math.pi / 8)
def pad4(n): return n + (n >> 4)

def consts(E):
    E(f"s_mov_b32 s36, 0x{SQH:08x}")
    E(f"s_mov_b32 s37, 0x{SQH:08x}")
    E(f"s_mov_b32 s38, 0x{f2u(C1):08x}")
    E(f"s_mov_b32 s39, 0x{f2u(S1):08x}")

def dft_pk(E, P, regs, sign):
    n = len(regs)
    if n == 1:
        return regs
    Ev = dft_pk(E, P, regs[0::2], sign)
    Od = dft_pk(E, P, regs[1::2], sign)
    out = [None] * n
    for k in range(n // 2):
        e = Ev[k]; o = Od[k]
        if k == 0:
            t = P.alloc_n(2, 2)
            pk_add(E, t, e, o, sub=True)
            pk_add(E, e, e, o)
            P.free_n(o, 2)
            out[k] = e; out[k + n // 2] = t
        elif 4 * k == n:
            t = P.alloc_n(2, 2)
            r1, r2 = ('-i', '+i') if sign < 0 else ('+i', '-i')
            pk_add_rot(E, t, e, o, r2)
            pk_add_rot(E, e, e, o, r1)
            P.free_n(o, 2)
            out[k] = e; out[k + n // 2] = t
        elif 8 * k == n or 8 * k == 3 * n:
            a = 1 if 8 * k == n else -1
            b = -1 if sign < 0 else 1
            t = P.alloc_n(2, 2)
            nl0 = 1 if a < 0 else 0; nh0 = 1 if a < 0 else 0
            nl1 = 1 if b > 0 else 0; nh1 = 1 if b < 0 else 0
            E(f"v_pk_add_f32 {pr(t)}, {pr(o)}, {pr(o)} op_sel:[0,1] op_sel_hi:[1,0] neg_lo:[{nl0},{nl1}] neg_hi:[{nh0},{nh1}]")
            E(f"v_pk_fma_f32 {pr(o)}, {pr(t)}, s[36:37], {pr(e)} neg_lo:[1,0,0] neg_hi:[1,0,0]")
            E(f"v_pk_fma_f32 {pr(e)}, {pr(t)}, s[36:37], {pr(e)}")
            P.free_n(t, 2)
            out[k] = e; out[k + n // 2] = o
        else:
            assert n == 16
            ang = sign * 2 * math.pi * k / 16
            a, b = math.cos(ang), math.sin(ang)
            def sel(v):
                idx = 0 if abs(abs(v) - C1) < 1e-9 else 1
                return idx, (1 if v < 0 else 0)
            ai, an = sel(a); bi, bn = sel(b)
            t = P.alloc_n(2, 2)
            E(f"v_pk_mul_f32 {pr(t)}, {pr(o)}, s[38:39] op_sel:[0,{ai}] op_sel_hi:[1,{ai}] neg_lo:[0,{an}] neg_hi:[0,{an}]")
            E(f"v_pk_fma_f32 {pr(t)}, {pr(o)}, s[38:39], {pr(t)} op_sel:[1,{bi},0] op_sel_hi:[0,{bi},1] neg_lo:[1,{bn},0] neg_hi:[0,{bn},0]")
            pk_add(E, o, e, t, sub=True)
            pk_add(E, e, e, t)
            P.free_n(t, 2)
            out[k] = e; out[k + n // 2] = o
    return out

def fft_pass(E, P, N, R, p, sign, vI, src, dst, vBase, vRd, EPT=16):
    T = N // EPT
    nb = EPT // R
    data = {}
    if src[0] == 'lds':
        for m in range(nb):
            for j in range(R):
                r = P.alloc_n(2, 2)
                idx = m * T + j * (N // R)
                assert idx % 16 == 0
                E(f"ds_read_b64 {pr(r)}, v{vRd} offset:{src[1] + pad4(idx) * 8}")
                data[(m, j)] = r
    else:
        data = dict(src[1])
    tw = {}
    if p > 1:
        for m in range(nb):
            vk = P.alloc()
            if m == 0:
                E(f"v_and_b32 v{vk}, 0x{p-1:x}, v{vI}")
            else:
                E(f"v_add_u32 v{vk}, {m*T}, v{vI}")
                E(f"v_and_b32 v{vk}, 0x{p-1:x}, v{vk}")
            E(f"v_cvt_f32_u32 v{vk}, v{vk}")
            for j in range(1, R):
                w = P.alloc_n(2, 2)
                E(f"v_mul_f32 v{w+1}, 0x{f2u(sign * j / (p * R)):08x}, v{vk}")
                E(f"v_cos_f32 v{w}, v{w+1}")
                E(f"v_sin_f32 v{w+1}, v{w+1}")
                tw[(m, j)] = w
            P.free(vk)
    if dst[0] == 'lds':
        wa = []
        for m in range(nb):
            vb = P.alloc(); vt = P.alloc()
            E(f"v_add_u32 v{vb}, {m*T}, v{vI}")
            if p > 1:
                E(f"v_and_b32 v{vt}, 0x{p-1:x}, v{vb}")
                E(f"v_sub_u32 v{vb}, v{vb}, v{vt}")
                E(f"v_lshl_add_u32 v{vb}, v{vb}, {int(math.log2(R))}, v{vt}")
            else:
                E(f"v_lshlrev_b32 v{vb}, {int(math.log2(R))}, v{vb}")
            E(f"v_lshrrev_b32 v{vt}, 4, v{vb}")
            E(f"v_add_u32 v{vb}, v{vb}, v{vt}")
            E(f"v_lshl_add_u32 v{vb}, v{vb}, 3, v{vBase}")
            P.free(vt)
            wa.append(vb)
    if src[0] == 'lds':
        E("s_waitcnt lgkmcnt(0)")
    else:
        E("s_nop 0")
    out = {}
    for m in range(nb):
        regs = []
        for j in range(R):
            u = data[(m, j)]
            if p > 1 and j > 0:
                w = tw[(m, j)]
                u = cmul_pk(E, P, u, w)
                P.free_n(w, 2)
            regs.append(u)
        o = dft_pk(E, P, regs, sign)
        for j in range(R):
            out[(m, j)] = o[j]
    if dst[0] == 'lds':
        for m in range(nb):
            offs = None
            for i in range(T):
                b = i + m * T
                k = b % p
                base = (b - k) * R + k
                o = [pad4(base + j * p) - pad4(base) for j in range(R)]
                if offs is None: offs = o
                assert offs == o, (N, R, p, m, i)
            for j in range(R):
                r = out[(m, j)]
                E(f"ds_write_b64 v{wa[m]}, {pr(r)} offset:{dst[1] + offs[j]*8}")
                P.free_n(r, 2)
            P.free(wa[m])
        return None
    return out
```

```python
from asmlib import *
import os
FDBG = os.environ.get('FDBG','')
from fftlib import fft_pass, build_table, cmul_pk, pr

MB = 1 << 20
XT_OFF = 0
XT_BYTES = 513 * 2048 * 8
WT_OFF = 16 * MB
WT_BYTES = 513 * 2048 * 4
H_OFF = 24 * MB
HN_OFF = 28 * MB
ACT_OFF = 32 * MB
W1T_OFF = 48 * MB
W2T_OFF = 56 * MB
XB = 2048 * 1024 * 2

def srd_from(E, d, ptr, off, nbytes):
    if off:
        E(f"s_add_u32 s{d}, s{ptr}, 0x{off:x}")
        E(f"s_addc_u32 s{d+1}, s{ptr+1}, 0")
    else:
        E(f"s_mov_b32 s{d}, s{ptr}")
        E(f"s_mov_b32 s{d+1}, s{ptr+1}")
    E(f"s_mov_b32 s{d+2}, 0x{nbytes:x}")
    E(f"s_mov_b32 s{d+3}, 0x00020000")

def wave_allsum(E, v, vt, st):
    for msk in (1, 2, 4, 8, 16):
        E(f"ds_swizzle_b32 v{vt}, v{v} offset:0x{(msk << 10) | 0x1f:04x}")
        E("s_waitcnt lgkmcnt(0)")
        E(f"v_add_f32 v{v}, v{v}, v{vt}")
    E("s_nop 1")
    E(f"v_readlane_b32 s{st}, v{v}, 0")
    E(f"v_readlane_b32 s{st+1}, v{v}, 32")
    E("s_nop 3")
    E(f"v_mov_b32 v{v}, s{st}")
    E(f"v_add_f32 v{v}, s{st+1}, v{v}")

def bf16r(E, v):
    E(f"v_cvt_pk_bf16_f32 v{v}, v{v}, v{v}")
    E(f"v_and_b32 v{v}, 0xffff0000, v{v}")

def layernorm16(E, P, xs, st):
    s = P.alloc(); t = P.alloc(); m = P.alloc()
    E(f"v_add_f32 v{s}, v{xs[0]}, v{xs[1]}")
    for r in xs[2:]:
        E(f"v_add_f32 v{s}, v{s}, v{r}")
    wave_allsum(E, s, t, st)
    E(f"v_mul_f32 v{m}, 0x{f2u(1.0/1024):08x}, v{s}")
    E(f"v_sub_f32 v{t}, v{xs[0]}, v{m}")
    E(f"v_mul_f32 v{s}, v{t}, v{t}")
    for r in xs[1:]:
        E(f"v_sub_f32 v{t}, v{r}, v{m}")
        E(f"v_fmac_f32 v{s}, v{t}, v{t}")
    wave_allsum(E, s, t, st)
    E(f"v_mul_f32 v{s}, 0x{f2u(1.0/1024):08x}, v{s}")
    bf16r(E, s)
    E(f"v_add_f32 v{s}, 0x{f2u(1e-5):08x}, v{s}")
    bf16r(E, s)
    E(f"v_sqrt_f32 v{s}, v{s}")
    E("s_nop 0")
    bf16r(E, s)
    E(f"v_rcp_f32 v{s}, v{s}")
    bf16r(E, m)
    for r in xs:
        E(f"v_sub_f32 v{r}, v{r}, v{m}")
        bf16r(E, r)
        E(f"v_mul_f32 v{r}, v{r}, v{s}")
        bf16r(E, r)
    P.free(s, t, m)

def transpose_tile_wave(E, srd_src, srd_dst, ld_src, ld_dst, ntiles_n, s_tile, base_v):
    magic = (1 << 32) // ntiles_n + 1
    E(f"s_mov_b32 s60, 0x{magic:x}")
    E(f"s_mul_hi_u32 s61, s{s_tile}, s60")
    E(f"s_mul_i32 s62, s61, {ntiles_n}")
    E(f"s_sub_u32 s62, s{s_tile}, s62")
    E(f"s_mul_i32 s63, s61, {64*ld_src*2}")
    E(f"s_lshl_b32 s64, s62, 7")
    E(f"s_add_u32 s63, s63, s64")
    E(f"s_mul_i32 s64, s62, {64*ld_dst*2}")
    E(f"s_lshl_b32 s65, s61, 7")
    E(f"s_add_u32 s64, s64, s65")
    vl = base_v; va = base_v + 1; vb = base_v + 2; vs = base_v + 3; vd = base_v + 4
    R0 = base_v + 8
    O0 = base_v + 40
    E(f"v_and_b32 v{vl}, 63, v0")
    E(f"v_and_b32 v{va}, 7, v{vl}")
    E(f"v_lshrrev_b32 v{vb}, 3, v{vl}")
    E(f"v_mul_u32_u24 v{vs}, {8*ld_src*2}, v{vb}")
    E(f"v_lshl_add_u32 v{vs}, v{va}, 4, v{vs}")
    E(f"v_mul_u32_u24 v{vd}, {8*ld_dst*2}, v{va}")
    E(f"v_lshl_add_u32 v{vd}, v{vb}, 4, v{vd}")
    for r in range(8):
        E(f"s_add_u32 s65, s63, {r*ld_src*2}")
        E(f"buffer_load_dwordx4 v[{R0+4*r}:{R0+4*r+3}], v{vs}, s[{srd_src}:{srd_src+3}], s65 offen")
    E("s_mov_b32 s66, 0x05040100")
    E("s_mov_b32 s67, 0x07060302")
    E("s_waitcnt vmcnt(0)")
    for n in range(8):
        for c in range(4):
            sel = 66 if n % 2 == 0 else 67
            E(f"v_perm_b32 v{O0+4*n+c}, v{R0+4*(2*c+1)+(n>>1)}, v{R0+4*(2*c)+(n>>1)}, s{sel}")
    for n in range(8):
        E(f"s_add_u32 s65, s64, {n*ld_dst*2}")
        E(f"buffer_store_dwordx4 v[{O0+4*n}:{O0+4*n+3}], v{vd}, s[{srd_dst}:{srd_dst+3}], s65 offen")

FB1 = pad(1024) * 8
TB1 = 8192
BA1 = TB1
BB1 = TB1 + 4 * FB1
def sqh(E):
    E(f"s_mov_b32 s36, 0x{SQH:08x}")
    E(f"s_mov_b32 s37, 0x{SQH:08x}")

def gen_k1(E):
    NT = 0 if 'notr' in FDBG else 112
    E.label("k1_kernel")
    E(f"s_cmp_ge_u32 s2, {256+NT}")
    E("s_cbranch_scc1 k1_end")
    E("s_load_dwordx4 s[4:7], s[0:1], 0")
    E("s_load_dwordx2 s[8:9], s[0:1], 16")
    E("s_load_dwordx2 s[10:11], s[0:1], 32")
    E("s_load_dwordx2 s[12:13], s[0:1], 72")
    E("s_waitcnt lgkmcnt(0)")
    E("s_cmp_ge_u32 s2, 256")
    E("s_cbranch_scc1 k1_tr")
    srd_from(E, 16, 4, 0, XB)
    srd_from(E, 20, 6, 0, 2048*513*2)
    srd_from(E, 24, 8, 0, 2048*513*2)
    srd_from(E, 28, 12, XT_OFF, XT_BYTES)
    srd_from(E, 32, 12, WT_OFF, WT_BYTES)
    P = Pool(16, 128)
    E("v_and_b32 v1, 63, v0")
    E("v_lshrrev_b32 v2, 6, v0")
    E("s_lshl_b32 s3, s2, 3")
    E("v_add_u32 v3, s3, v2")
    E("v_lshlrev_b32 v3, 11, v3")
    E("v_lshl_add_u32 v3, v1, 4, v3")
    E("buffer_load_dwordx4 v[8:11], v3, s[16:19], 0 offen")
    E("buffer_load_dwordx4 v[12:15], v3, s[16:19], 0 offen offset:1024")
    E("s_mul_i32 s40, s3, 1026")
    E("v_lshlrev_b32 v4, 1, v0")
    wr = [P.alloc() for _ in range(8)]
    wi = [P.alloc() for _ in range(8)]
    for r in range(8):
        E(f"s_add_u32 s41, s40, {r*1026}")
        E(f"buffer_load_ushort v{wr[r]}, v4, s[20:23], s41 offen")
        E(f"buffer_load_ushort v{wi[r]}, v4, s[24:27], s41 offen")
    sqh(E)
    build_table(E, P, 1024, 512, 0, 0)
    E("s_waitcnt vmcnt(16)")
    xs = [P.alloc() for _ in range(16)]
    for q in range(8):
        E(f"v_lshlrev_b32 v{xs[2*q]}, 16, v{8+q}")
        E(f"v_and_b32 v{xs[2*q+1]}, 0xffff0000, v{8+q}")
    layernorm16(E, P, xs, 42)
    E("v_lshrrev_b32 v5, 1, v2")
    E(f"v_mul_u32_u24 v5, {FB1}, v5")
    E("v_and_b32 v6, 1, v2")
    E("v_lshl_add_u32 v5, v6, 2, v5")
    E("v_mul_u32_u24 v6, 72, v1")
    E("v_add_u32 v5, v5, v6")
    for e in range(8):
        E(f"ds_write_b32 v5, v{xs[e]} offset:{BA1 + e*8}")
        E(f"ds_write_b32 v5, v{xs[8+e]} offset:{BA1 + pad(512)*8 + e*8}")
    P.free(*xs)
    E("s_waitcnt vmcnt(0)")
    wq = P.alloc_n(8, 4)
    for r in range(8):
        E(f"v_lshl_or_b32 v{wq+r}, v{wi[r]}, 16, v{wr[r]}")
    E("v_lshlrev_b32 v4, 13, v0")
    E("s_lshl_b32 s41, s3, 2")
    E(f"buffer_store_dwordx4 v[{wq}:{wq+3}], v4, s[32:35], s41 offen")
    E(f"buffer_store_dwordx4 v[{wq+4}:{wq+7}], v4, s[32:35], s41 offen offset:16")
    E("v_cmp_gt_u32 vcc, 8, v0")
    E("s_and_saveexec_b64 s[44:45], vcc")
    E("s_cbranch_execz k1_skip512")
    E("v_mul_u32_u24 v4, 1026, v0")
    E("v_add_u32 v4, 1024, v4")
    E(f"buffer_load_ushort v{wr[0]}, v4, s[20:23], s40 offen")
    E(f"buffer_load_ushort v{wi[0]}, v4, s[24:27], s40 offen")
    E("v_lshlrev_b32 v4, 2, v0")
    E(f"v_add_u32 v4, 0x{512*8192:x}, v4")
    E("s_waitcnt vmcnt(0)")
    E(f"v_lshl_or_b32 v{wr[0]}, v{wi[0]}, 16, v{wr[0]}")
    E(f"buffer_store_dword v{wr[0]}, v4, s[32:35], s41 offen")
    E.label("k1_skip512")
    E("s_or_b64 exec, exec, s[44:45]")
    P.free(*wr); P.free(*wi); P.free_n(wq, 8)
    vI = P.alloc(); vBase = P.alloc(); vRd = P.alloc()
    E(f"v_and_b32 v{vI}, 127, v0")
    E(f"v_lshrrev_b32 v{vBase}, 7, v0")
    E(f"v_mul_u32_u24 v{vBase}, {FB1}, v{vBase}")
    E(f"v_lshrrev_b32 v{vRd}, 3, v{vI}")
    E(f"v_add_u32 v{vRd}, v{vRd}, v{vI}")
    E(f"v_lshl_add_u32 v{vRd}, v{vRd}, 3, v{vBase}")
    E("s_waitcnt lgkmcnt(0)")
    E("s_barrier")
    p = 1
    cur = 0
    for R in (8, 8, 8, 2):
        fft_pass(E, P, 1024, R, p, -1, vI, ('lds', BB1 if cur else BA1), ('lds', BA1 if cur else BB1), vBase, vRd, 0, 36)
        E("s_waitcnt lgkmcnt(0)")
        E("s_barrier")
        cur = 1 - cur
        p *= R
    vF = P.alloc(); vK = P.alloc(); vA = P.alloc(); vB = P.alloc(); vG = P.alloc(); vt = P.alloc()
    E(f"v_and_b32 v{vF}, 3, v0")
    E(f"v_lshrrev_b32 v{vK}, 2, v0")
    E(f"v_mul_u32_u24 v{vF}, {FB1}, v{vF}")
    E(f"v_lshrrev_b32 v{vt}, 3, v{vK}")
    E(f"v_add_u32 v{vt}, v{vt}, v{vK}")
    E(f"v_lshl_add_u32 v{vA}, v{vt}, 3, v{vF}")
    E(f"v_lshlrev_b32 v{vG}, 14, v{vK}")
    E(f"v_and_b32 v{vt}, 3, v0")
    E(f"v_lshl_add_u32 v{vG}, v{vt}, 4, v{vG}")
    E("s_lshl_b32 s41, s3, 3")
    def sep(m, last=False):
        E(f"v_add_u32 v{vt}, {128*m}, v{vK}")
        E(f"v_sub_u32 v{vt}, 1024, v{vt}")
        E(f"v_and_b32 v{vt}, 1023, v{vt}")
        E(f"v_lshrrev_b32 v{vB}, 3, v{vt}")
        E(f"v_add_u32 v{vt}, v{vt}, v{vB}")
        E(f"v_lshl_add_u32 v{vB}, v{vt}, 3, v{vF}")
        z = P.alloc_n(2, 2); y = P.alloc_n(2, 2); o = P.alloc_n(4, 4)
        E(f"ds_read_b64 v[{z}:{z+1}], v{vA} offset:{(BB1 if cur else BA1) + pad(128*m)*8}")
        E(f"ds_read_b64 v[{y}:{y+1}], v{vB} offset:{BB1 if cur else BA1}")
        E("s_waitcnt lgkmcnt(0)")
        E(f"v_add_f32 v{o}, v{z}, v{y}")
        E(f"v_sub_f32 v{o+1}, v{z+1}, v{y+1}")
        E(f"v_add_f32 v{o+2}, v{z+1}, v{y+1}")
        E(f"v_sub_f32 v{o+3}, v{y}, v{z}")
        E(f"s_add_u32 s42, s41, {128*m*16384}")
        E(f"buffer_store_dwordx4 v[{o}:{o+3}], v{vG}, s[28:31], s42 offen")
        E("s_nop 1")
        P.free_n(z, 2); P.free_n(y, 2); P.free_n(o, 4)
    for m in range(4):
        sep(m)
    E("v_cmp_gt_u32 vcc, 4, v0")
    E("s_and_saveexec_b64 s[44:45], vcc")
    E("s_cbranch_execz k1_end")
    sep(4)
    E("s_branch k1_end")
    E.label("k1_tr")
    srd_from(E, 16, 10, 0, 1024*3584*2)
    srd_from(E, 20, 12, W1T_OFF, 1024*3584*2)
    E("v_lshrrev_b32 v1, 6, v0")
    E("s_nop 0")
    E("v_readfirstlane_b32 s40, v1")
    E("s_sub_u32 s41, s2, 256")
    E("s_lshl_b32 s41, s41, 3")
    E("s_add_u32 s41, s41, s40")
    transpose_tile_wave(E, 16, 20, 3584, 1024, 56, 41, 8)
    E.label("k1_end")
    E("s_endpgm")
    return (256 + NT, 512, TB1 + 8 * FB1)

FB2 = pad(2048) * 8
TB2 = 16384
BA2 = TB2
BB2 = TB2 + FB2

def gen_k2(E):
    NT = 0 if 'notr' in FDBG else 224
    E.label("k2_kernel")
    E(f"s_cmp_ge_u32 s2, {513+NT}")
    E("s_cbranch_scc1 k2_end")
    E("s_load_dwordx2 s[10:11], s[0:1], 48")
    E("s_load_dwordx2 s[12:13], s[0:1], 72")
    E("s_waitcnt lgkmcnt(0)")
    E("s_cmp_ge_u32 s2, 513")
    E("s_cbranch_scc1 k2_tr")
    srd_from(E, 28, 12, XT_OFF, XT_BYTES)
    srd_from(E, 32, 12, WT_OFF, WT_BYTES)
    P = Pool(8, 128)
    vI = 0
    vBase = P.alloc(); vRd = P.alloc(); vG = P.alloc()
    E("s_lshl_b32 s3, s2, 14")
    E("s_lshl_b32 s4, s2, 13")
    E(f"v_lshlrev_b32 v{vG}, 3, v0")
    data = {}
    for j in range(8):
        r = P.alloc_n(2, 2)
        E(f"s_add_u32 s5, s3, {j*2048}")
        E(f"buffer_load_dwordx2 v[{r}:{r+1}], v{vG}, s[28:31], s5 offen")
        data[(0, j)] = r
    wreg = {}
    vW = P.alloc()
    E(f"v_lshlrev_b32 v{vW}, 2, v0")
    for m in range(2):
        for j in range(4):
            w = P.alloc()
            off = (m * 256 + j * 512) * 4
            E(f"s_add_u32 s5, s4, {off}")
            E(f"buffer_load_dword v{w}, v{vW}, s[32:35], s5 offen")
            wreg[(m, j)] = w
    P.free(vW)
    sqh(E)
    build_table(E, P, 2048, 256, 0, 0)
    E(f"v_mov_b32 v{vBase}, 0")
    E(f"v_lshrrev_b32 v{vRd}, 3, v0")
    E(f"v_add_u32 v{vRd}, v{vRd}, v0")
    E(f"v_lshlrev_b32 v{vRd}, 3, v{vRd}")
    E("s_waitcnt vmcnt(8)")
    def bar():
        E("s_waitcnt lgkmcnt(0)")
        E("s_barrier")
    fp = lambda R, p, sg, src, dst: fft_pass(E, P, 2048, R, p, sg, vI, src, dst, vBase, vRd, 0, 36)
    fp(8, 1, -1, ('regs', data), ('lds', BA2)); bar()
    if 'nopass' not in FDBG:
        fp(8, 8, -1, ('lds', BA2), ('lds', BB2)); bar()
        fp(8, 64, -1, ('lds', BB2), ('lds', BA2)); bar()
    out = fp(4, 512, -1, ('lds', BA2), ('regs',))
    E("s_waitcnt vmcnt(0)")
    scale = f2u(1.0 / (2048 * 1024 * 2))
    for key in out:
        w = wreg[key]
        c = P.alloc_n(2, 2)
        E(f"v_lshlrev_b32 v{c}, 16, v{w}")
        E(f"v_and_b32 v{c+1}, 0xffff0000, v{w}")
        E(f"v_mul_f32 v{c}, 0x{scale:08x}, v{c}")
        E(f"v_mul_f32 v{c+1}, 0x{scale:08x}, v{c+1}")
        out[key] = cmul_pk(E, P, out[key], c)
        P.free_n(c, 2); P.free(w)
    fp(4, 1, +1, ('regs', out), ('lds', BB2)); bar()
    if 'nopass' not in FDBG:
        fp(8, 4, +1, ('lds', BB2), ('lds', BA2)); bar()
        fp(8, 32, +1, ('lds', BA2), ('lds', BB2)); bar()
    out = fp(8, 256, +1, ('lds', BB2), ('regs',))
    for j in range(8):
        r = out[(0, j)]
        E(f"s_add_u32 s5, s3, {j*2048}")
        E(f"buffer_store_dwordx2 v[{r}:{r+1}], v{vG}, s[28:31], s5 offen")
    E("s_branch k2_end")
    E.label("k2_tr")
    srd_from(E, 16, 10, 0, 1024*3584*2)
    srd_from(E, 20, 12, W2T_OFF, 1024*3584*2)
    E("v_lshrrev_b32 v1, 6, v0")
    E("s_nop 0")
    E("v_readfirstlane_b32 s40, v1")
    E("s_sub_u32 s41, s2, 513")
    E("s_lshl_b32 s41, s41, 2")
    E("s_add_u32 s41, s41, s40")
    transpose_tile_wave(E, 16, 20, 1024, 3584, 16, 41, 8)
    E.label("k2_end")
    E("s_endpgm")
    return (513 + NT, 256, TB2 + 2 * FB2)

def gen_k3(E):
    E.label("k3_kernel")
    E("s_cmp_ge_u32 s2, 256")
    E("s_cbranch_scc1 k3_end")
    E("s_load_dwordx2 s[4:5], s[0:1], 0")
    E("s_load_dwordx2 s[12:13], s[0:1], 72")
    E("s_waitcnt lgkmcnt(0)")
    srd_from(E, 16, 4, 0, XB)
    srd_from(E, 28, 12, XT_OFF, XT_BYTES)
    srd_from(E, 20, 12, H_OFF, XB)
    srd_from(E, 24, 12, HN_OFF, XB)
    P = Pool(16, 128)
    RAW = BB1
    E("s_lshl_b32 s3, s2, 3")
    E("v_and_b32 v1, 63, v0")
    E("v_lshrrev_b32 v2, 6, v0")
    E("v_add_u32 v3, s3, v2")
    E("v_lshlrev_b32 v3, 11, v3")
    E("v_lshl_add_u32 v3, v1, 4, v3")
    E("buffer_load_dwordx4 v[8:11], v3, s[16:19], 0 offen")
    E("buffer_load_dwordx4 v[12:15], v3, s[16:19], 0 offen offset:1024")
    vG = P.alloc(); vL = P.alloc(); vt = P.alloc()
    E(f"v_lshrrev_b32 v{vG}, 2, v0")
    E(f"v_lshlrev_b32 v{vG}, 14, v{vG}")
    E(f"v_and_b32 v{vt}, 3, v0")
    E(f"v_lshl_add_u32 v{vG}, v{vt}, 4, v{vG}")
    E(f"v_lshlrev_b32 v{vL}, 4, v0")
    E(f"v_add_u32 v{vL}, {RAW}, v{vL}")
    E("s_lshl_b32 s41, s3, 3")
    rr = [P.alloc_n(4, 4) for _ in range(5)]
    for m in range(4):
        E(f"s_add_u32 s42, s41, {128*m*16384}")
        E(f"buffer_load_dwordx4 v[{rr[m]}:{rr[m]+3}], v{vG}, s[28:31], s42 offen")
    E("v_cmp_gt_u32 vcc, 4, v0")
    E("s_and_saveexec_b64 s[44:45], vcc")
    E("s_cbranch_execz k3_s512")
    E(f"s_add_u32 s42, s41, {512*16384}")
    E(f"buffer_load_dwordx4 v[{rr[4]}:{rr[4]+3}], v{vG}, s[28:31], s42 offen")
    E("s_waitcnt vmcnt(0)")
    E(f"ds_write_b128 v{vL}, v[{rr[4]}:{rr[4]+3}] offset:{4*8192}")
    E.label("k3_s512")
    E("s_or_b64 exec, exec, s[44:45]")
    E("s_waitcnt vmcnt(0)")
    for m in range(4):
        E(f"ds_write_b128 v{vL}, v[{rr[m]}:{rr[m]+3}] offset:{m*8192}")
    for r in rr: P.free_n(r, 4)
    P.free(vG, vL, vt)
    sqh(E)
    build_table(E, P, 1024, 512, 0, 0)
    vI = P.alloc(); vBase = P.alloc(); vRd = P.alloc(); vF = P.alloc()
    E(f"v_and_b32 v{vI}, 127, v0")
    E(f"v_lshrrev_b32 v{vF}, 7, v0")
    E(f"v_mul_u32_u24 v{vBase}, {FB1}, v{vF}")
    E(f"v_lshrrev_b32 v{vRd}, 3, v{vI}")
    E(f"v_add_u32 v{vRd}, v{vRd}, v{vI}")
    E(f"v_lshl_add_u32 v{vRd}, v{vRd}, 3, v{vBase}")
    vP = P.alloc(); vN = P.alloc()
    E(f"v_lshlrev_b32 v{vP}, 6, v{vI}")
    E(f"v_lshl_add_u32 v{vP}, v{vF}, 4, v{vP}")
    E(f"v_sub_u32 v{vN}, 128, v{vI}")
    E(f"v_lshlrev_b32 v{vN}, 6, v{vN}")
    E(f"v_lshl_add_u32 v{vN}, v{vF}, 4, v{vN}")
    E(f"v_add_u32 v{vP}, {RAW}, v{vP}")
    E(f"v_add_u32 v{vN}, {RAW}, v{vN}")
    E("s_waitcnt lgkmcnt(0)")
    E("s_barrier")
    raw = []
    for j in range(8):
        r = P.alloc_n(4, 4)
        if j < 4:
            E(f"ds_read_b128 v[{r}:{r+3}], v{vP} offset:{j*8192}")
        else:
            E(f"ds_read_b128 v[{r}:{r+3}], v{vN} offset:{(7-j)*8192}")
        raw.append(r)
    E(f"v_cmp_ne_u32 vcc, 0, v{vI}")
    E("s_waitcnt lgkmcnt(0)")
    for j in (0, 4):
        r = raw[j]
        E(f"v_cndmask_b32 v{r+1}, 0, v{r+1}, vcc")
        E(f"v_cndmask_b32 v{r+3}, 0, v{r+3}, vcc")
    data = {}
    for j in range(8):
        r = raw[j]
        z = P.alloc_n(2, 2)
        if j < 4:
            E(f"v_sub_f32 v{z}, v{r}, v{r+3}")
            E(f"v_add_f32 v{z+1}, v{r+1}, v{r+2}")
        else:
            E(f"v_add_f32 v{z}, v{r}, v{r+3}")
            E(f"v_sub_f32 v{z+1}, v{r+2}, v{r+1}")
        P.free_n(r, 4)
        data[(0, j)] = z
    P.free(vP, vN)
    def bar():
        E("s_waitcnt lgkmcnt(0)")
        E("s_barrier")
    fp = lambda R, p, src, dst: fft_pass(E, P, 1024, R, p, +1, vI, src, dst, vBase, vRd, 0, 36)
    fp(8, 1, ('regs', data), ('lds', BA1)); bar()
    fp(8, 8, ('lds', BA1), ('lds', BB1)); bar()
    fp(8, 64, ('lds', BB1), ('lds', BA1)); bar()
    fp(2, 512, ('lds', BA1), ('lds', BB1)); bar()
    E("v_lshrrev_b32 v5, 1, v2")
    E(f"v_mul_u32_u24 v5, {FB1}, v5")
    E("v_and_b32 v6, 1, v2")
    E("v_lshl_add_u32 v5, v6, 2, v5")
    E("v_mul_u32_u24 v6, 72, v1")
    E("v_add_u32 v5, v5, v6")
    ys = [P.alloc() for _ in range(16)]
    for e in range(8):
        E(f"ds_read_b32 v{ys[e]}, v5 offset:{BB1 + e*8}")
        E(f"ds_read_b32 v{ys[8+e]}, v5 offset:{BB1 + pad(512)*8 + e*8}")
    E("s_waitcnt vmcnt(0) lgkmcnt(0)")
    xs = [P.alloc() for _ in range(16)]
    for q in range(8):
        E(f"v_lshlrev_b32 v{xs[2*q]}, 16, v{8+q}")
        E(f"v_and_b32 v{xs[2*q+1]}, 0xffff0000, v{8+q}")
    for e in range(16):
        bf16r(E, ys[e])
        E(f"v_add_f32 v{xs[e]}, v{xs[e]}, v{ys[e]}")
        bf16r(E, xs[e])
    for q in range(8):
        E(f"v_cvt_pk_bf16_f32 v{8+q}, v{xs[2*q]}, v{xs[2*q+1]}")
    E("buffer_store_dwordx4 v[8:11], v3, s[20:23], 0 offen")
    E("buffer_store_dwordx4 v[12:15], v3, s[20:23], 0 offen offset:1024")
    layernorm16(E, P, xs, 42)
    o = P.alloc_n(8, 4)
    for q in range(8):
        E(f"v_cvt_pk_bf16_f32 v{o+q}, v{xs[2*q]}, v{xs[2*q+1]}")
    E(f"buffer_store_dwordx4 v[{o}:{o+3}], v3, s[24:27], 0 offen")
    E(f"buffer_store_dwordx4 v[{o+4}:{o+7}], v3, s[24:27], 0 offen offset:1024")
    E.label("k3_end")
    E("s_endpgm")
    return (256, 512, TB1 + 8 * FB1)
```

```python
from asmlib import *
from fftlib import cmul_pk, pr
from fftlib2 import fft_pass, consts, pad4
from gen_fft import (srd_from, wave_allsum, bf16r, transpose_tile_wave, XT_OFF, XT_BYTES, WT_OFF, WT_BYTES,
                     H_OFF, HN_OFF, ACT_OFF, W1T_OFF, W2T_OFF, XB)
import os
FDBG = os.environ.get('FDBG', '')

XP = 16384 + 256
WP = 8192 + 256
XT_BYTES = 513 * XP
WT_BYTES = 513 * WP
FBW = pad4(1024) * 8

STAMP = 'stamp' in FDBG
def stamp_init(E, wg):
    if not STAMP: return
    E("s_load_dwordx2 s[84:85], s[0:1], 64")
    E("s_waitcnt lgkmcnt(0)")
    E("s_mov_b32 s88, s84"); E("s_mov_b32 s89, s85"); E("s_mov_b32 s90, 256"); E("s_mov_b32 s91, 0x00020000")
    E(f"s_cmp_eq_u32 s2, {wg}")
    E("s_cselect_b32 s90, 256, 0")
    E("v_mov_b32 v126, 0")
def stamp(E, i):
    if not STAMP: return
    E("s_memtime s[86:87]")
    E("s_waitcnt lgkmcnt(0)")
    E("v_mov_b32 v127, s86")
    E(f"buffer_store_dword v127, v126, s[88:91], 0 offen offset:{i*4}")

def allsum2(E, va, vb, ta, tb, st):
    for msk in (1, 2, 4, 8, 16):
        E(f"ds_swizzle_b32 v{ta}, v{va} offset:0x{(msk << 10) | 0x1f:04x}")
        E(f"ds_swizzle_b32 v{tb}, v{vb} offset:0x{(msk << 10) | 0x1f:04x}")
        E("s_waitcnt lgkmcnt(0)")
        E(f"v_add_f32 v{va}, v{va}, v{ta}")
        E(f"v_add_f32 v{vb}, v{vb}, v{tb}")
    E("s_nop 1")
    E(f"v_readlane_b32 s{st}, v{va}, 0")
    E(f"v_readlane_b32 s{st+1}, v{va}, 32")
    E(f"v_readlane_b32 s{st+2}, v{vb}, 0")
    E(f"v_readlane_b32 s{st+3}, v{vb}, 32")
    E("s_nop 3")
    E(f"v_mov_b32 v{va}, s{st}")
    E(f"v_mov_b32 v{vb}, s{st+2}")
    E(f"v_add_f32 v{va}, s{st+1}, v{va}")
    E(f"v_add_f32 v{vb}, s{st+3}, v{vb}")

def layernorm2(E, P, prs, st):
    s = P.alloc_n(2, 2); t = P.alloc_n(2, 2); m = P.alloc_n(2, 2)
    E(f"v_pk_add_f32 {pr(s)}, {pr(prs[0])}, {pr(prs[1])}")
    for r in prs[2:]:
        E(f"v_pk_add_f32 {pr(s)}, {pr(s)}, {pr(r)}")
    allsum2(E, s, s + 1, t, t + 1, st)
    E(f"v_mul_f32 v{m}, 0x{f2u(1.0/1024):08x}, v{s}")
    E(f"v_mul_f32 v{m+1}, 0x{f2u(1.0/1024):08x}, v{s+1}")
    E(f"v_pk_add_f32 {pr(t)}, {pr(prs[0])}, {pr(m)} neg_lo:[0,1] neg_hi:[0,1]")
    E(f"v_pk_mul_f32 {pr(s)}, {pr(t)}, {pr(t)}")
    for r in prs[1:]:
        E(f"v_pk_add_f32 {pr(t)}, {pr(r)}, {pr(m)} neg_lo:[0,1] neg_hi:[0,1]")
        E(f"v_pk_fma_f32 {pr(s)}, {pr(t)}, {pr(t)}, {pr(s)}")
    allsum2(E, s, s + 1, t, t + 1, st)
    for h in (0, 1):
        E(f"v_mul_f32 v{s+h}, 0x{f2u(1.0/1024):08x}, v{s+h}")
        bf16r(E, s + h)
        E(f"v_add_f32 v{s+h}, 0x{f2u(1e-5):08x}, v{s+h}")
        bf16r(E, s + h)
        E(f"v_sqrt_f32 v{s+h}, v{s+h}")
        E("s_nop 0")
        bf16r(E, s + h)
        E(f"v_rcp_f32 v{s+h}, v{s+h}")
        bf16r(E, m + h)
    for r in prs:
        E(f"v_pk_add_f32 {pr(r)}, {pr(r)}, {pr(m)} neg_lo:[0,1] neg_hi:[0,1]")
        E(f"v_cvt_pk_bf16_f32 v{t}, v{r}, v{r+1}")
        E(f"v_lshlrev_b32 v{r}, 16, v{t}")
        E(f"v_and_b32 v{r+1}, 0xffff0000, v{t}")
        E(f"v_pk_mul_f32 {pr(r)}, {pr(r)}, {pr(s)}")
        E(f"v_cvt_pk_bf16_f32 v{t}, v{r}, v{r+1}")
        E(f"v_lshlrev_b32 v{r}, 16, v{t}")
        E(f"v_and_b32 v{r+1}, 0xffff0000, v{t}")
    P.free_n(s, 2); P.free_n(t, 2); P.free_n(m, 2)

def unpack_rows(E, prs, ra, rb):
    for q in range(8):
        E(f"v_lshlrev_b32 v{prs[2*q]}, 16, v{ra+q}")
        E(f"v_and_b32 v{prs[2*q+1]}, 0xffff0000, v{ra+q}")
        E(f"v_lshlrev_b32 v{prs[2*q]+1}, 16, v{rb+q}")
        E(f"v_and_b32 v{prs[2*q+1]+1}, 0xffff0000, v{rb+q}")

def row_lds_addr(E, vdst, vlane, vwbase):
    E(f"v_lshrrev_b32 v{vdst}, 1, v{vlane}")
    E(f"v_lshl_add_u32 v{vdst}, v{vlane}, 3, v{vdst}")
    E(f"v_lshl_add_u32 v{vdst}, v{vdst}, 3, v{vwbase}")

def gen_k1(E):
    NTW = 256
    NT = 224
    E.label("k1_kernel")
    E(f"s_cmp_ge_u32 s2, {256+NTW+NT}")
    E("s_cbranch_scc1 k1_end")
    E("s_load_dwordx4 s[4:7], s[0:1], 0")
    E("s_load_dwordx2 s[8:9], s[0:1], 16")
    E("s_load_dwordx2 s[10:11], s[0:1], 32")
    E("s_load_dwordx2 s[12:13], s[0:1], 72")
    E("s_waitcnt lgkmcnt(0)")
    E(f"s_cmp_ge_u32 s2, {256+NTW}")
    E("s_cbranch_scc1 k1_tr")
    E("s_cmp_ge_u32 s2, 256")
    E("s_cbranch_scc1 k1_wt")
    srd_from(E, 16, 4, 0, XB)
    srd_from(E, 28, 12, XT_OFF, XT_BYTES)
    P = Pool(24, 128)
    E("v_and_b32 v1, 63, v0")
    E("v_lshrrev_b32 v2, 6, v0")
    E("s_lshl_b32 s3, s2, 3")
    E("v_lshlrev_b32 v3, 1, v2")
    E("v_add_u32 v3, s3, v3")
    E("v_lshlrev_b32 v3, 11, v3")
    E("v_lshl_add_u32 v3, v1, 4, v3")
    E("buffer_load_dwordx4 v[8:11], v3, s[16:19], 0 offen")
    E("buffer_load_dwordx4 v[12:15], v3, s[16:19], 0 offen offset:1024")
    E("buffer_load_dwordx4 v[16:19], v3, s[16:19], 0 offen offset:2048")
    E("buffer_load_dwordx4 v[20:23], v3, s[16:19], 0 offen offset:3072")
    consts(E)
    vBase = P.alloc(); vRd = P.alloc(); vR = P.alloc()
    E(f"v_mul_u32_u24 v{vBase}, {FBW}, v2")
    E(f"v_lshrrev_b32 v{vRd}, 4, v1")
    E(f"v_add_u32 v{vRd}, v{vRd}, v1")
    E(f"v_lshl_add_u32 v{vRd}, v{vRd}, 3, v{vBase}")
    row_lds_addr(E, vR, 1, vBase)
    prs = [P.alloc_n(2, 2) for _ in range(16)]
    E("s_waitcnt vmcnt(0)")
    unpack_rows(E, prs, 8, 16)
    layernorm2(E, P, prs, 42)
    for e in range(8):
        E(f"ds_write_b64 v{vR}, {pr(prs[e])} offset:{e*8}")
        E(f"ds_write_b64 v{vR}, {pr(prs[8+e])} offset:{pad4(512)*8 + e*8}")
    for r in prs: P.free_n(r, 2)
    p = 1
    for R in (16, 16, 4):
        fft_pass(E, P, 1024, R, p, -1, 1, ('lds', 0), ('lds', 0), vBase, vRd)
        p *= R
    E("s_waitcnt lgkmcnt(0)")
    E("s_barrier")
    vF = P.alloc(); vK = P.alloc(); vA = P.alloc(); vG = P.alloc(); vt = P.alloc()
    E(f"v_and_b32 v{vF}, 3, v0")
    E(f"v_lshrrev_b32 v{vK}, 2, v0")
    E(f"v_mul_u32_u24 v{vF}, {FBW}, v{vF}")
    E(f"v_lshrrev_b32 v{vt}, 4, v{vK}")
    E(f"v_add_u32 v{vt}, v{vt}, v{vK}")
    E(f"v_lshl_add_u32 v{vA}, v{vt}, 3, v{vF}")
    E(f"v_mul_u32_u24 v{vG}, {XP}, v{vK}")
    E(f"v_and_b32 v{vt}, 3, v0")
    E(f"v_lshl_add_u32 v{vG}, v{vt}, 4, v{vG}")
    E("s_lshl_b32 s41, s3, 3")
    zs = []
    def sep_read(m):
        vB = P.alloc()
        E(f"v_add_u32 v{vt}, {64*m}, v{vK}")
        E(f"v_sub_u32 v{vt}, 1024, v{vt}")
        E(f"v_and_b32 v{vt}, 1023, v{vt}")
        E(f"v_lshrrev_b32 v{vB}, 4, v{vt}")
        E(f"v_add_u32 v{vt}, v{vt}, v{vB}")
        E(f"v_lshl_add_u32 v{vB}, v{vt}, 3, v{vF}")
        z = P.alloc_n(2, 2); y = P.alloc_n(2, 2)
        E(f"ds_read_b64 {pr(z)}, v{vA} offset:{pad4(64*m)*8}")
        E(f"ds_read_b64 {pr(y)}, v{vB}")
        P.free(vB)
        return z, y
    def sep_store(m, z, y):
        o = P.alloc_n(4, 4)
        E(f"v_add_f32 v{o}, v{z}, v{y}")
        E(f"v_sub_f32 v{o+1}, v{z+1}, v{y+1}")
        E(f"v_add_f32 v{o+2}, v{z+1}, v{y+1}")
        E(f"v_sub_f32 v{o+3}, v{y}, v{z}")
        E(f"s_add_u32 s42, s41, {64*m*XP}")
        E(f"buffer_store_dwordx4 v[{o}:{o+3}], v{vG}, s[28:31], s42 offen")
        P.free_n(z, 2); P.free_n(y, 2)
        return o
    zz = [sep_read(m) for m in range(8)]
    E("s_waitcnt lgkmcnt(0)")
    oo = [sep_store(m, *zz[m]) for m in range(8)]
    E("v_cmp_gt_u32 vcc, 4, v0")
    E("s_and_saveexec_b64 s[44:45], vcc")
    E("s_cbranch_execz k1_end")
    z, y = sep_read(8)
    E("s_waitcnt lgkmcnt(0)")
    sep_store(8, z, y)
    E("s_branch k1_end")
    E.label("k1_wt")
    srd_from(E, 20, 6, 0, 2048*513*2)
    srd_from(E, 24, 8, 0, 2048*513*2)
    srd_from(E, 32, 12, WT_OFF, WT_BYTES)
    E("s_sub_u32 s3, s2, 256")
    E("s_lshl_b32 s3, s3, 3")
    E("s_mul_i32 s40, s3, 1026")
    E("v_lshlrev_b32 v4, 1, v0")
    for c in range(2):
        for r in range(8):
            E(f"s_add_u32 s41, s40, {r*1026 + c*512}")
            E(f"buffer_load_ushort v{8+c*16+r}, v4, s[20:23], s41 offen")
            E(f"buffer_load_ushort v{16+c*16+r}, v4, s[24:27], s41 offen")
    E(f"v_mul_u32_u24 v5, {WP}, v0")
    E("s_lshl_b32 s41, s3, 2")
    E(f"s_add_u32 s42, s41, {256*WP}")
    E("s_waitcnt vmcnt(0)")
    for c in range(2):
        for r in range(8):
            E(f"v_lshl_or_b32 v{40+c*8+r}, v{16+c*16+r}, 16, v{8+c*16+r}")
    E("buffer_store_dwordx4 v[40:43], v5, s[32:35], s41 offen")
    E("buffer_store_dwordx4 v[44:47], v5, s[32:35], s41 offen offset:16")
    E("buffer_store_dwordx4 v[48:51], v5, s[32:35], s42 offen")
    E("buffer_store_dwordx4 v[52:55], v5, s[32:35], s42 offen offset:16")
    E("v_cmp_gt_u32 vcc, 8, v0")
    E("s_and_saveexec_b64 s[44:45], vcc")
    E("s_cbranch_execz k1_end")
    E("v_mul_u32_u24 v4, 1026, v0")
    E("v_add_u32 v4, 1024, v4")
    E("buffer_load_ushort v8, v4, s[20:23], s40 offen")
    E("buffer_load_ushort v9, v4, s[24:27], s40 offen")
    E("v_lshlrev_b32 v4, 2, v0")
    E(f"v_add_u32 v4, 0x{512*WP:x}, v4")
    E("s_waitcnt vmcnt(0)")
    E("v_lshl_or_b32 v8, v9, 16, v8")
    E("buffer_store_dword v8, v4, s[32:35], s41 offen")
    E("s_branch k1_end")
    E.label("k1_tr")
    srd_from(E, 16, 10, 0, 1024*3584*2)
    srd_from(E, 20, 12, W1T_OFF, 1024*3584*2)
    E("v_lshrrev_b32 v1, 6, v0")
    E("s_nop 0")
    E("v_readfirstlane_b32 s40, v1")
    E(f"s_sub_u32 s41, s2, {256+NTW}")
    E("s_lshl_b32 s41, s41, 2")
    E("s_add_u32 s41, s41, s40")
    transpose_tile_wave(E, 16, 20, 3584, 1024, 56, 41, 8)
    E.label("k1_end")
    E("s_endpgm")
    return (256 + NTW + NT, 256, 4 * FBW)

FB2 = pad4(2048) * 8

def gen_k2(E):
    NT = 448
    E.label("k2_kernel")
    E(f"s_cmp_ge_u32 s2, {513+NT}")
    E("s_cbranch_scc1 k2_end")
    E("s_load_dwordx2 s[10:11], s[0:1], 48")
    E("s_load_dwordx2 s[12:13], s[0:1], 72")
    E("s_waitcnt lgkmcnt(0)")
    E("s_cmp_ge_u32 s2, 513")
    E("s_cbranch_scc1 k2_tr")
    srd_from(E, 28, 12, XT_OFF, XT_BYTES)
    srd_from(E, 32, 12, WT_OFF, WT_BYTES)
    P = Pool(8, 124)
    vI = 0
    stamp_init(E, 100); stamp(E, 0)
    vBase = P.alloc(); vRd = P.alloc(); vG = P.alloc()
    E(f"s_mul_i32 s3, s2, {XP}")
    E(f"s_mul_i32 s4, s2, {WP}")
    E(f"v_lshlrev_b32 v{vG}, 3, v0")
    data = {}
    for j in range(16):
        r = P.alloc_n(2, 2)
        E(f"s_add_u32 s5, s3, {j*1024}")
        E(f"buffer_load_dwordx2 {pr(r)}, v{vG}, s[28:31], s5 offen")
        data[(0, j)] = r
    wreg = {}
    vW = P.alloc()
    E(f"v_lshlrev_b32 v{vW}, 2, v0")
    for m in range(2):
        for j in range(8):
            w = P.alloc()
            off = (m * 128 + j * 256) * 4
            E(f"s_add_u32 s5, s4, {off}")
            E(f"buffer_load_dword v{w}, v{vW}, s[32:35], s5 offen")
            wreg[(m, j)] = w
    P.free(vW)
    consts(E)
    E(f"v_mov_b32 v{vBase}, 0")
    E(f"v_lshrrev_b32 v{vRd}, 4, v0")
    E(f"v_add_u32 v{vRd}, v{vRd}, v0")
    E(f"v_lshlrev_b32 v{vRd}, 3, v{vRd}")
    E("s_waitcnt vmcnt(16)")
    def bar():
        E("s_waitcnt lgkmcnt(0)")
        E("s_barrier")
    fp = lambda R, p, sg, src, dst: fft_pass(E, P, 2048, R, p, sg, vI, src, dst, vBase, vRd)
    stamp(E, 1)
    fp(16, 1, -1, ('regs', data), ('lds', 0)); bar()
    stamp(E, 2)
    fp(16, 16, -1, ('lds', 0), ('lds', FB2)); bar()
    stamp(E, 3)
    out = fp(8, 256, -1, ('lds', FB2), ('regs',))
    stamp(E, 4)
    E("s_waitcnt vmcnt(0)")
    scale = f2u(1.0 / (2048 * 1024 * 2))
    for key in out:
        w = wreg[key]
        c = P.alloc_n(2, 2)
        E(f"v_lshlrev_b32 v{c}, 16, v{w}")
        E(f"v_and_b32 v{c+1}, 0xffff0000, v{w}")
        E(f"v_mul_f32 v{c}, 0x{scale:08x}, v{c}")
        E(f"v_mul_f32 v{c+1}, 0x{scale:08x}, v{c+1}")
        out[key] = cmul_pk(E, P, out[key], c)
        P.free_n(c, 2); P.free(w)
    stamp(E, 5)
    fp(8, 1, +1, ('regs', out), ('lds', 0)); bar()
    stamp(E, 6)
    fp(16, 8, +1, ('lds', 0), ('lds', FB2)); bar()
    stamp(E, 7)
    out = fp(16, 128, +1, ('lds', FB2), ('regs',))
    stamp(E, 8)
    for j in range(16):
        r = out[(0, j)]
        E(f"s_add_u32 s5, s3, {j*1024}")
        E(f"buffer_store_dwordx2 {pr(r)}, v{vG}, s[28:31], s5 offen")
    if STAMP:
        E("s_waitcnt vmcnt(0)")
    stamp(E, 9)
    E("s_branch k2_end")
    E.label("k2_tr")
    srd_from(E, 16, 10, 0, 1024*3584*2)
    srd_from(E, 20, 12, W2T_OFF, 1024*3584*2)
    E("v_lshrrev_b32 v1, 6, v0")
    E("s_nop 0")
    E("v_readfirstlane_b32 s40, v1")
    E("s_sub_u32 s41, s2, 513")
    E("s_lshl_b32 s41, s41, 1")
    E("s_add_u32 s41, s41, s40")
    transpose_tile_wave(E, 16, 20, 1024, 3584, 16, 41, 8)
    E.label("k2_end")
    E("s_endpgm")
    return (513 + NT, 128, 2 * FB2)

def gen_k3(E):
    RAW = 4 * FBW
    E.label("k3_kernel")
    E("s_cmp_ge_u32 s2, 256")
    E("s_cbranch_scc1 k3_end")
    E("s_load_dwordx2 s[4:5], s[0:1], 0")
    E("s_load_dwordx2 s[12:13], s[0:1], 72")
    E("s_waitcnt lgkmcnt(0)")
    srd_from(E, 16, 4, 0, XB)
    srd_from(E, 28, 12, XT_OFF, XT_BYTES)
    srd_from(E, 20, 12, H_OFF, XB)
    srd_from(E, 24, 12, HN_OFF, XB)
    P = Pool(24, 128)
    E("s_lshl_b32 s3, s2, 3")
    E("v_and_b32 v1, 63, v0")
    E("v_lshrrev_b32 v2, 6, v0")
    vG = P.alloc(); vL = P.alloc(); vt = P.alloc()
    E(f"v_lshrrev_b32 v{vG}, 2, v0")
    E(f"v_mul_u32_u24 v{vG}, {XP}, v{vG}")
    E(f"v_and_b32 v{vt}, 3, v0")
    E(f"v_lshl_add_u32 v{vG}, v{vt}, 4, v{vG}")
    E(f"v_lshlrev_b32 v{vL}, 4, v0")
    E(f"v_add_u32 v{vL}, {RAW}, v{vL}")
    E("s_lshl_b32 s41, s3, 3")
    rr = [P.alloc_n(4, 4) for _ in range(9)]
    for m in range(8):
        E(f"s_add_u32 s42, s41, {64*m*XP}")
        E(f"buffer_load_dwordx4 v[{rr[m]}:{rr[m]+3}], v{vG}, s[28:31], s42 offen")
    E("v_cmp_gt_u32 vcc, 4, v0")
    E("s_and_saveexec_b64 s[44:45], vcc")
    E("s_cbranch_execz k3_s512")
    E(f"s_add_u32 s42, s41, {512*XP}")
    E(f"buffer_load_dwordx4 v[{rr[8]}:{rr[8]+3}], v{vG}, s[28:31], s42 offen")
    E("s_waitcnt vmcnt(0)")
    E(f"ds_write_b128 v{vL}, v[{rr[8]}:{rr[8]+3}] offset:{8*4096}")
    E.label("k3_s512")
    E("s_or_b64 exec, exec, s[44:45]")
    E("v_lshlrev_b32 v3, 1, v2")
    E("v_add_u32 v3, s3, v3")
    E("v_lshlrev_b32 v3, 11, v3")
    E("v_lshl_add_u32 v3, v1, 4, v3")
    E("buffer_load_dwordx4 v[8:11], v3, s[16:19], 0 offen")
    E("buffer_load_dwordx4 v[12:15], v3, s[16:19], 0 offen offset:1024")
    E("buffer_load_dwordx4 v[16:19], v3, s[16:19], 0 offen offset:2048")
    E("buffer_load_dwordx4 v[20:23], v3, s[16:19], 0 offen offset:3072")
    E("s_waitcnt vmcnt(4)")
    for m in range(8):
        E(f"ds_write_b128 v{vL}, v[{rr[m]}:{rr[m]+3}] offset:{m*4096}")
    for r in rr: P.free_n(r, 4)
    P.free(vG, vL, vt)
    consts(E)
    vBase = P.alloc(); vRd = P.alloc(); vR = P.alloc()
    E(f"v_mul_u32_u24 v{vBase}, {FBW}, v2")
    E(f"v_lshrrev_b32 v{vRd}, 4, v1")
    E(f"v_add_u32 v{vRd}, v{vRd}, v1")
    E(f"v_lshl_add_u32 v{vRd}, v{vRd}, 3, v{vBase}")
    row_lds_addr(E, vR, 1, vBase)
    vP = P.alloc(); vN = P.alloc()
    E(f"v_lshlrev_b32 v{vP}, 6, v1")
    E(f"v_lshl_add_u32 v{vP}, v2, 4, v{vP}")
    E(f"v_add_u32 v{vP}, {RAW}, v{vP}")
    E(f"v_sub_u32 v{vN}, 64, v1")
    E(f"v_lshlrev_b32 v{vN}, 6, v{vN}")
    E(f"v_lshl_add_u32 v{vN}, v2, 4, v{vN}")
    E(f"v_add_u32 v{vN}, {RAW}, v{vN}")
    E("s_waitcnt lgkmcnt(0)")
    E("s_barrier")
    data = {}
    E("v_cmp_ne_u32 vcc, 0, v1")
    for half in range(2):
        raw = []
        for j in range(half * 8, half * 8 + 8):
            r = P.alloc_n(4, 4)
            if j < 8:
                E(f"ds_read_b128 v[{r}:{r+3}], v{vP} offset:{j*4096}")
            else:
                E(f"ds_read_b128 v[{r}:{r+3}], v{vN} offset:{(15-j)*4096}")
            raw.append((j, r))
        E("s_waitcnt lgkmcnt(0)")
        for j, r in raw:
            if j in (0, 8):
                E(f"v_cndmask_b32 v{r+1}, 0, v{r+1}, vcc")
                E(f"v_cndmask_b32 v{r+3}, 0, v{r+3}, vcc")
            z = P.alloc_n(2, 2)
            if j < 8:
                E(f"v_sub_f32 v{z}, v{r}, v{r+3}")
                E(f"v_add_f32 v{z+1}, v{r+1}, v{r+2}")
            else:
                E(f"v_add_f32 v{z}, v{r}, v{r+3}")
                E(f"v_sub_f32 v{z+1}, v{r+2}, v{r+1}")
            P.free_n(r, 4)
            data[(0, j)] = z
    P.free(vP, vN)
    fft_pass(E, P, 1024, 16, 1, +1, 1, ('regs', data), ('lds', 0), vBase, vRd)
    fft_pass(E, P, 1024, 16, 16, +1, 1, ('lds', 0), ('lds', 0), vBase, vRd)
    fft_pass(E, P, 1024, 4, 256, +1, 1, ('lds', 0), ('lds', 0), vBase, vRd)
    ys = [P.alloc_n(2, 2) for _ in range(16)]
    for e in range(8):
        E(f"ds_read_b64 {pr(ys[e])}, v{vR} offset:{e*8}")
        E(f"ds_read_b64 {pr(ys[8+e])}, v{vR} offset:{pad4(512)*8 + e*8}")
    prs = [P.alloc_n(2, 2) for _ in range(16)]
    E("s_waitcnt vmcnt(0)")
    unpack_rows(E, prs, 8, 16)
    E("s_waitcnt lgkmcnt(0)")
    t = P.alloc()
    for e in range(16):
        y = ys[e]; xx = prs[e]
        E(f"v_cvt_pk_bf16_f32 v{t}, v{y}, v{y+1}")
        E(f"v_lshlrev_b32 v{y}, 16, v{t}")
        E(f"v_and_b32 v{y+1}, 0xffff0000, v{t}")
        E(f"v_pk_add_f32 {pr(xx)}, {pr(xx)}, {pr(y)}")
        E(f"v_cvt_pk_bf16_f32 v{t}, v{xx}, v{xx+1}")
        E(f"v_lshlrev_b32 v{xx}, 16, v{t}")
        E(f"v_and_b32 v{xx+1}, 0xffff0000, v{t}")
        P.free_n(y, 2)
    P.free(t)
    def pack_store(srd):
        for q in range(8):
            E(f"v_cvt_pk_bf16_f32 v{8+q}, v{prs[2*q]}, v{prs[2*q+1]}")
            E(f"v_cvt_pk_bf16_f32 v{16+q}, v{prs[2*q]+1}, v{prs[2*q+1]+1}")
        E(f"buffer_store_dwordx4 v[8:11], v3, s[{srd}:{srd+3}], 0 offen")
        E(f"buffer_store_dwordx4 v[12:15], v3, s[{srd}:{srd+3}], 0 offen offset:1024")
        E(f"buffer_store_dwordx4 v[16:19], v3, s[{srd}:{srd+3}], 0 offen offset:2048")
        E(f"buffer_store_dwordx4 v[20:23], v3, s[{srd}:{srd+3}], 0 offen offset:3072")
    pack_store(20)
    layernorm2(E, P, prs, 42)
    pack_store(24)
    E.label("k3_end")
    E("s_endpgm")
    return (256, 256, RAW + 513 * 64)
```

```python
from asmlib import *
from gen_fft import srd_from, H_OFF, HN_OFF, ACT_OFF, W1T_OFF, W2T_OFF, XB, bf16r
import os

def gen_gemm(E, name, TM, TN, K, M, N, A_off, B_off, xcd_tm, xcd_tn, epi, NS=3, dbg=''):
    ld2 = K * 2
    NK = K // 64
    SS = (TM + TN) * 128
    WTM, WTN = TM // 2, TN // 2
    NT, NU = WTM // 16, WTN // 16
    GA, GB = TM // 32, TN // 32
    ND = GA + GB
    ntm, ntn = M // TM, N // TN
    nwg = ntm * ntn
    assert nwg == 256
    E.label(name)
    E(f"s_cmp_ge_u32 s2, {nwg}")
    E(f"s_cbranch_scc1 {name}_end")
    E("s_load_dwordx2 s[4:5], s[0:1], 40")
    E("s_load_dwordx2 s[6:7], s[0:1], 56")
    E("s_load_dwordx2 s[12:13], s[0:1], 72")
    gx = ntn // xcd_tn
    E("s_and_b32 s40, s2, 7")
    E("s_lshr_b32 s41, s2, 3")
    E(f"s_lshr_b32 s42, s40, {int(math.log2(gx))}")
    E(f"s_and_b32 s43, s40, {gx-1}")
    E(f"s_lshr_b32 s44, s41, {int(math.log2(xcd_tn))}")
    E(f"s_and_b32 s45, s41, {xcd_tn-1}")
    E(f"s_lshl_b32 s42, s42, {int(math.log2(xcd_tm))}")
    E("s_add_u32 s42, s42, s44")
    E(f"s_lshl_b32 s43, s43, {int(math.log2(xcd_tn))}")
    E("s_add_u32 s43, s43, s45")
    E("v_lshrrev_b32 v1, 6, v0")
    E("v_and_b32 v2, 63, v0")
    E("s_nop 0")
    E("v_readfirstlane_b32 s46, v1")
    E("s_waitcnt lgkmcnt(0)")
    E("s_cmp_ge_u32 s46, 4")
    E(f"s_cbranch_scc1 {name}_prod")
    E("v_lshrrev_b32 v4, 4, v2")
    E("v_and_b32 v5, 7, v2")
    E("v_xor_b32 v4, v4, v5")
    E("v_and_b32 v5, 15, v2")
    E("v_lshlrev_b32 v5, 7, v5")
    E("v_lshl_add_u32 v4, v4, 4, v5")
    E("s_lshr_b32 s58, s46, 1")
    E("s_and_b32 s59, s46, 1")
    E(f"s_mul_i32 s60, s58, {WTM*128}")
    E(f"s_mul_i32 s61, s59, {WTN*128}")
    E(f"s_add_u32 s61, s61, {TM*128}")
    E("v_add_u32 v6, s60, v4")
    E("v_xor_b32 v7, 64, v6")
    E("v_add_u32 v8, s61, v4")
    E("v_xor_b32 v9, 64, v8")
    SR = 80
    for st in range(NS):
        E(f"s_mov_b32 s{SR+st}, {st*SS}")
    F0A = 16; F0B = F0A + 4 * NT; F1A = F0B + 4 * NU; F1B = F1A + 4 * NT
    NACC = NT * NU * 4
    for r in range(NACC):
        E(f"v_accvgpr_write_b32 a{r}, 0")
    def read_frags(FA, FB, va, vb):
        if 'nolds' in dbg: return
        for t in range(NT):
            E(f"ds_read_b128 v[{FA+4*t}:{FA+4*t+3}], v{va} offset:{t*2048}")
        for u in range(NU):
            E(f"ds_read_b128 v[{FB+4*u}:{FB+4*u+3}], v{vb} offset:{u*2048}")
    def mfmas(FA, FB):
        if 'nomfma' in dbg: return
        for t in range(NT):
            for u in range(NU):
                a = (t * NU + u) * 4
                E(f"v_mfma_f32_16x16x32_bf16 a[{a}:{a+3}], v[{FB+4*u}:{FB+4*u+3}], v[{FA+4*t}:{FA+4*t+3}], a[{a}:{a+3}]")
    NF = NT + NU
    def frag_list(FA, FB, va, vb):
        L = []
        if 'nolds' in dbg: return L
        L.append(f"ds_read_b128 v[{FA}:{FA+3}], v{va} offset:0")
        for u in range(NU):
            L.append(f"ds_read_b128 v[{FB+4*u}:{FB+4*u+3}], v{vb} offset:{u*2048}")
        for t in range(1, NT):
            L.append(f"ds_read_b128 v[{FA+4*t}:{FA+4*t+3}], v{va} offset:{t*2048}")
        return L
    def mfma_list(FA, FB):
        L = []
        if 'nomfma' in dbg: return L
        for t in range(NT):
            for u in range(NU):
                a = (t * NU + u) * 4
                L.append(f"v_mfma_f32_16x16x32_bf16 a[{a}:{a+3}], v[{FB+4*u}:{FB+4*u+3}], v[{FA+4*t}:{FA+4*t+3}], a[{a}:{a+3}]")
        return L
    def interleave(ms, rs, first=1, step=2):
        out = []
        ri = 0
        for i, m in enumerate(ms):
            out.append(m)
            if i >= first and (i - first) % step == 0 and ri < len(rs):
                out.append(rs[ri]); ri += 1
        out += rs[ri:]
        return out
    E("s_barrier")
    E(f"v_add_u32 v10, s{SR}, v6")
    E(f"v_add_u32 v12, s{SR}, v8")
    for l in frag_list(F0A, F0B, 10, 12): E(l)
    E(f"v_add_u32 v11, s{SR}, v7")
    E(f"v_add_u32 v13, s{SR}, v9")
    STEP = max(1, (NT * NU - 2) // NF)
    def cbody(last):
        E("s_waitcnt lgkmcnt(0)")
        for l in interleave(mfma_list(F0A, F0B), frag_list(F1A, F1B, 11, 13), 0, STEP): E(l)
        if not last:
            E(f"s_mov_b32 s62, s{SR}")
            for st in range(NS - 1):
                E(f"s_mov_b32 s{SR+st}, s{SR+st+1}")
            E(f"s_mov_b32 s{SR+NS-1}, s62")
            E(f"v_add_u32 v10, s{SR}, v6")
            E(f"v_add_u32 v12, s{SR}, v8")
            E("s_waitcnt lgkmcnt(0)")
            E("s_barrier")
            for l in interleave(mfma_list(F1A, F1B), frag_list(F0A, F0B, 10, 12), 0, STEP): E(l)
            E(f"v_add_u32 v11, s{SR}, v7")
            E(f"v_add_u32 v13, s{SR}, v9")
        else:
            E("s_waitcnt lgkmcnt(0)")
            for l in mfma_list(F1A, F1B): E(l)
    E(f"s_mov_b32 s63, {NK-1}")
    E.label(f"{name}_cloop")
    cbody(False)
    E("s_sub_u32 s63, s63, 1")
    E("s_cmp_lg_u32 s63, 0")
    E(f"s_cbranch_scc1 {name}_cloop")
    cbody(True)
    E("s_barrier")
    E("s_nop 15")
    CS = TN * 2 + 16
    E(f"s_mul_i32 s60, s58, {WTM*CS}")
    E(f"s_mul_i32 s61, s59, {WTN*2}")
    E("s_add_u32 s60, s60, s61")
    E("v_and_b32 v4, 15, v2")
    E(f"v_mul_u32_u24 v4, {CS}, v4")
    E("v_lshrrev_b32 v5, 4, v2")
    E("v_lshl_add_u32 v4, v5, 3, v4")
    E("v_add_u32 v4, s60, v4")
    for t in range(NT):
        for u in range(NU):
            a = (t * NU + u) * 4
            b = 16 + ((t * NU + u) % 8) * 6
            for r in range(4):
                E(f"v_accvgpr_read_b32 v{b+r}, a{a+r}")
            E(f"v_cvt_pk_bf16_f32 v{b+4}, v{b}, v{b+1}")
            E(f"v_cvt_pk_bf16_f32 v{b+5}, v{b+2}, v{b+3}")
            E(f"ds_write_b64 v4, v[{b+4}:{b+5}] offset:{t*16*CS + u*32}")
    E(f"s_branch {name}_epi")
    E.label(f"{name}_prod")
    srd_from(E, 16, 12, A_off, M * ld2)
    srd_from(E, 20, 12, B_off, N * ld2)
    E("s_sub_u32 s46, s46, 4")
    E("v_lshrrev_b32 v4, 3, v2")
    E("v_and_b32 v5, 7, v2")
    E("v_xor_b32 v5, v5, v4")
    E(f"v_mul_u32_u24 v3, {ld2}, v4")
    E("v_lshl_add_u32 v3, v5, 4, v3")
    E(f"s_mul_i32 s47, s42, {TM}")
    E("s_lshl_b32 s49, s46, 3")
    E("s_add_u32 s47, s47, s49")
    E(f"s_mul_i32 s47, s47, {ld2}")
    E(f"s_mul_i32 s48, s43, {TN}")
    E("s_add_u32 s48, s48, s49")
    E(f"s_mul_i32 s48, s48, {ld2}")
    E("s_lshl_b32 s50, s46, 10")
    def dma(stage_sgpr):
        if 'nodma' in dbg: return
        for i in range(GA):
            E(f"s_add_u32 s51, s47, {i*32*ld2}")
            E(f"s_add_u32 m0, s{stage_sgpr}, {i*4096}")
            E("s_nop 0")
            E(f"buffer_load_dwordx4 v3, s[16:19], s51 offen lds")
        for i in range(GB):
            E(f"s_add_u32 s51, s48, {i*32*ld2}")
            E(f"s_add_u32 m0, s{stage_sgpr}, {TM*128 + i*4096}")
            E("s_nop 0")
            E(f"buffer_load_dwordx4 v3, s[20:23], s51 offen lds")
        E("s_add_u32 s47, s47, 128")
        E("s_add_u32 s48, s48, 128")
    SD = 70
    for st in range(NS):
        E(f"s_add_u32 s{SD+st}, s50, {st*SS}")
    for st in range(NS):
        dma(SD + st)
    assert (NS - 1) * ND <= 63
    E(f"s_waitcnt vmcnt({(NS-1)*ND})")
    E("s_barrier")
    def rot():
        E(f"s_mov_b32 s62, s{SD}")
        for st in range(NS - 1):
            E(f"s_mov_b32 s{SD+st}, s{SD+st+1}")
        E(f"s_mov_b32 s{SD+NS-1}, s62")
    E(f"s_mov_b32 s63, {NK-NS}")
    E.label(f"{name}_ploop")
    E(f"s_waitcnt vmcnt({(NS-2)*ND})")
    E("s_barrier")
    dma(SD)
    rot()
    E("s_sub_u32 s63, s63, 1")
    E("s_cmp_lg_u32 s63, 0")
    E(f"s_cbranch_scc1 {name}_ploop")
    for r in range(NS - 1):
        E(f"s_waitcnt vmcnt({(NS-2-r)*ND})")
        E("s_barrier")
    E("s_barrier")
    E.label(f"{name}_epi")
    if 'noepi' in dbg:
        E(f"s_branch {name}_end")
    NCH = TN // 8
    P = Pool(16, 128)
    if epi == 'mish':
        assert NCH == 28
        srd_from(E, 24, 4, 0, 3584 * 2)
        srd_from(E, 28, 12, ACT_OFF, M * N * 2)
        E("s_mov_b32 s60, 0x924924a")
        E("v_mul_hi_u32 v4, s60, v0")
        E("v_mul_u32_u24 v5, 28, v4")
        E("v_sub_u32 v5, v0, v5")
        E(f"s_mul_i32 s61, s43, {TN*2}")
        E("v_lshlrev_b32 v6, 4, v5")
        E("buffer_load_dwordx4 v[8:11], v6, s[24:27], s61 offen")
        E(f"v_mul_u32_u24 v7, {CS}, v4")
        E("v_add_u32 v7, v7, v6")
        E(f"v_mul_u32_u24 v12, {N*2}, v4")
        E("v_add_u32 v12, v12, v6")
        E(f"s_mul_i32 s62, s42, {TM*N*2}")
        E("s_add_u32 s62, s62, s61")
        E("s_waitcnt lgkmcnt(0)")
        E("s_barrier")
        E("v_cmp_gt_u32 vcc, 448, v0")
        E("s_and_saveexec_b64 s[64:65], vcc")
        E(f"s_cbranch_execz {name}_end")
        cr = [P.alloc_n(4, 4) for _ in range(8)]
        for i in range(8):
            E(f"ds_read_b128 v[{cr[i]}:{cr[i]+3}], v7 offset:{i*16*CS}")
        E("s_waitcnt vmcnt(0)")
        bfl = [P.alloc() for _ in range(8)]
        for q in range(4):
            E(f"v_lshlrev_b32 v{bfl[2*q]}, 16, v{8+q}")
            E(f"v_and_b32 v{bfl[2*q+1]}, 0xffff0000, v{8+q}")
        LOG2E = f2u(1.4426950408889634)
        for i in range(8):
            E(f"s_waitcnt lgkmcnt({7-i})")
            c = cr[i]
            if 'nomath' in dbg:
                E(f"s_add_u32 s61, s62, {i*16*N*2}")
                E(f"buffer_store_dwordx4 v[{c}:{c+3}], v12, s[28:31], s61 offen")
                continue
            x = [P.alloc() for _ in range(8)]
            e = [P.alloc() for _ in range(8)]
            for q in range(4):
                E(f"v_lshlrev_b32 v{x[2*q]}, 16, v{c+q}")
                E(f"v_and_b32 v{x[2*q+1]}, 0xffff0000, v{c+q}")
            for r in range(8):
                E(f"v_add_f32 v{x[r]}, v{x[r]}, v{bfl[r]}")
            for q in range(4):
                E(f"v_cvt_pk_bf16_f32 v{c+q}, v{x[2*q]}, v{x[2*q+1]}")
            for q in range(4):
                E(f"v_lshlrev_b32 v{x[2*q]}, 16, v{c+q}")
                E(f"v_and_b32 v{x[2*q+1]}, 0xffff0000, v{c+q}")
            for r in range(8):
                E(f"v_min_f32 v{e[r]}, 0x41a00000, v{x[r]}")
            for r in range(8):
                E(f"v_mul_f32 v{e[r]}, 0x{LOG2E:08x}, v{e[r]}")
            for r in range(8):
                E(f"v_exp_f32 v{e[r]}, v{e[r]}")
            n_ = [P.alloc() for _ in range(8)]
            for r in range(8):
                E(f"v_add_f32 v{n_[r]}, 2.0, v{e[r]}")
            for r in range(8):
                E(f"v_mul_f32 v{n_[r]}, v{n_[r]}, v{e[r]}")
            for r in range(8):
                E(f"v_add_f32 v{e[r]}, 2.0, v{n_[r]}")
            for r in range(8):
                E(f"v_rcp_f32 v{e[r]}, v{e[r]}")
            for r in range(8):
                E(f"v_mul_f32 v{n_[r]}, v{n_[r]}, v{x[r]}")
            for r in range(8):
                E(f"v_mul_f32 v{n_[r]}, v{n_[r]}, v{e[r]}")
            for q in range(4):
                E(f"v_cvt_pk_bf16_f32 v{c+q}, v{n_[2*q]}, v{n_[2*q+1]}")
            E(f"s_add_u32 s61, s62, {i*16*N*2}")
            if 'nostore' not in dbg:
                E(f"buffer_store_dwordx4 v[{c}:{c+3}], v12, s[28:31], s61 offen")
            P.free(*x); P.free(*e); P.free(*n_)
    else:
        assert NCH == 8
        srd_from(E, 24, 12, H_OFF, XB)
        srd_from(E, 28, 6, 0, XB)
        E("v_lshrrev_b32 v4, 3, v0")
        E("v_and_b32 v5, 7, v0")
        E("v_lshlrev_b32 v6, 4, v5")
        E(f"v_mul_u32_u24 v7, {CS}, v4")
        E("v_add_u32 v7, v7, v6")
        E(f"v_mul_u32_u24 v12, {N*2}, v4")
        E("v_add_u32 v12, v12, v6")
        E(f"s_mul_i32 s62, s42, {TM*N*2}")
        E(f"s_mul_i32 s61, s43, {TN*2}")
        E("s_add_u32 s62, s62, s61")
        hr = [P.alloc_n(4, 4) for _ in range(2)]
        for i in range(2):
            E(f"s_add_u32 s61, s62, {i*64*N*2}")
            E(f"buffer_load_dwordx4 v[{hr[i]}:{hr[i]+3}], v12, s[24:27], s61 offen")
        E("s_waitcnt lgkmcnt(0)")
        E("s_barrier")
        cr = [P.alloc_n(4, 4) for _ in range(2)]
        for i in range(2):
            E(f"ds_read_b128 v[{cr[i]}:{cr[i]+3}], v7 offset:{i*64*CS}")
        E("s_waitcnt vmcnt(0) lgkmcnt(0)")
        for i in range(2):
            c = cr[i]; hh = hr[i]
            x = [P.alloc() for _ in range(8)]
            y = [P.alloc() for _ in range(8)]
            for q in range(4):
                E(f"v_lshlrev_b32 v{x[2*q]}, 16, v{c+q}")
                E(f"v_and_b32 v{x[2*q+1]}, 0xffff0000, v{c+q}")
                E(f"v_lshlrev_b32 v{y[2*q]}, 16, v{hh+q}")
                E(f"v_and_b32 v{y[2*q+1]}, 0xffff0000, v{hh+q}")
            for r in range(8):
                E(f"v_add_f32 v{x[r]}, v{x[r]}, v{y[r]}")
            for q in range(4):
                E(f"v_cvt_pk_bf16_f32 v{c+q}, v{x[2*q]}, v{x[2*q+1]}")
            E(f"s_add_u32 s61, s62, {i*64*N*2}")
            E(f"buffer_store_dwordx4 v[{c}:{c+3}], v12, s[28:31], s61 offen")
            P.free(*x); P.free(*y)
    E.label(f"{name}_end")
    E("s_endpgm")
    return (nwg, 512, NS * SS)

def kernels():
    dbg = os.environ.get('GDBG', '')
    k4 = lambda E: gen_gemm(E, "k4_kernel", 128, 224, 1024, 2048, 3584, HN_OFF, W1T_OFF, 8, 4, 'mish', dbg=dbg)
    k5 = lambda E: gen_gemm(E, "k5_kernel", 128, 64, 3584, 2048, 1024, ACT_OFF, W2T_OFF, 4, 8, 'res', NS=4, dbg=dbg)
    return [("k4_kernel", k4, 128 + 112, 102, 128), ("k5_kernel", k5, 128 + 32, 102, 128)]
```

```python
from asmlib import *
from fftlib import pr, pk_add, pk_add_rot, cmul_pk
from sched import Capture

C1 = math.cos(math.pi / 8); S1 = math.sin(math.pi / 8)
def pad4(n): return n + (n >> 4)

def consts(E):
    E(f"s_mov_b32 s36, 0x{SQH:08x}")
    E(f"s_mov_b32 s37, 0x{SQH:08x}")
    E(f"s_mov_b32 s38, 0x{f2u(C1):08x}")
    E(f"s_mov_b32 s39, 0x{f2u(S1):08x}")

def dft_pk(E, P, regs, sign):
    n = len(regs)
    if n == 1:
        return regs
    Ev = dft_pk(E, P, regs[0::2], sign)
    Od = dft_pk(E, P, regs[1::2], sign)
    out = [None] * n
    for k in range(n // 2):
        e = Ev[k]; o = Od[k]
        if k == 0:
            t = P.alloc_n(2, 2)
            pk_add(E, t, e, o, sub=True)
            pk_add(E, e, e, o)
            P.free_n(o, 2)
            out[k] = e; out[k + n // 2] = t
        elif 4 * k == n:
            t = P.alloc_n(2, 2)
            r1, r2 = ('-i', '+i') if sign < 0 else ('+i', '-i')
            pk_add_rot(E, t, e, o, r2)
            pk_add_rot(E, e, e, o, r1)
            P.free_n(o, 2)
            out[k] = e; out[k + n // 2] = t
        elif 8 * k == n or 8 * k == 3 * n:
            a = 1 if 8 * k == n else -1
            b = -1 if sign < 0 else 1
            t = P.alloc_n(2, 2)
            nl0 = 1 if a < 0 else 0; nh0 = 1 if a < 0 else 0
            nl1 = 1 if b > 0 else 0; nh1 = 1 if b < 0 else 0
            E(f"v_pk_add_f32 {pr(t)}, {pr(o)}, {pr(o)} op_sel:[0,1] op_sel_hi:[1,0] neg_lo:[{nl0},{nl1}] neg_hi:[{nh0},{nh1}]")
            E(f"v_pk_fma_f32 {pr(o)}, {pr(t)}, s[36:37], {pr(e)} neg_lo:[1,0,0] neg_hi:[1,0,0]")
            E(f"v_pk_fma_f32 {pr(e)}, {pr(t)}, s[36:37], {pr(e)}")
            P.free_n(t, 2)
            out[k] = e; out[k + n // 2] = o
        else:
            assert n == 16
            ang = sign * 2 * math.pi * k / 16
            a, b = math.cos(ang), math.sin(ang)
            def sel(v):
                idx = 0 if abs(abs(v) - C1) < 1e-9 else 1
                return idx, (1 if v < 0 else 0)
            ai, an = sel(a); bi, bn = sel(b)
            t = P.alloc_n(2, 2)
            E(f"v_pk_mul_f32 {pr(t)}, {pr(o)}, s[38:39] op_sel:[0,{ai}] op_sel_hi:[1,{ai}] neg_lo:[0,{an}] neg_hi:[0,{an}]")
            E(f"v_pk_fma_f32 {pr(t)}, {pr(o)}, s[38:39], {pr(t)} op_sel:[1,{bi},0] op_sel_hi:[0,{bi},1] neg_lo:[1,{bn},0] neg_hi:[0,{bn},0]")
            pk_add(E, o, e, t, sub=True)
            pk_add(E, e, e, t)
            P.free_n(t, 2)
            out[k] = e; out[k + n // 2] = o
    return out

def fft_pass(E, P, N, R, p, sign, vI, src, dst, vBase, vRd, EPT=16):
    T = N // EPT
    nb = EPT // R
    data = {}
    if src[0] == 'lds':
        for m in range(nb):
            for j in range(R):
                r = P.alloc_n(2, 2)
                idx = m * T + j * (N // R)
                assert idx % 16 == 0
                E(f"ds_read_b64 {pr(r)}, v{vRd} offset:{src[1] + pad4(idx) * 8}")
                data[(m, j)] = r
    else:
        data = dict(src[1])
    E0 = E
    E = Capture(E0)
    tw = {}
    if p > 1:
        for m in range(nb):
            vk = P.alloc()
            if m == 0:
                E(f"v_and_b32 v{vk}, 0x{p-1:x}, v{vI}")
            else:
                E(f"v_add_u32 v{vk}, {m*T}, v{vI}")
                E(f"v_and_b32 v{vk}, 0x{p-1:x}, v{vk}")
            E(f"v_cvt_f32_u32 v{vk}, v{vk}")
            w1 = P.alloc_n(2, 2)
            E(f"v_mul_f32 v{w1+1}, 0x{f2u(sign * 1.0 / (p * R)):08x}, v{vk}")
            E(f"v_cos_f32 v{w1}, v{w1+1}")
            E(f"v_sin_f32 v{w1+1}, v{w1+1}")
            E("s_nop 0")
            tw[(m, 1)] = w1
            for j in range(2, R):
                a = tw[(m, j // 2)]; b = tw[(m, j - j // 2)]
                w = P.alloc_n(2, 2)
                E(f"v_pk_mul_f32 {pr(w)}, {pr(a)}, {pr(b)} op_sel:[0,0] op_sel_hi:[1,0]")
                E(f"v_pk_fma_f32 {pr(w)}, {pr(a)}, {pr(b)}, {pr(w)} op_sel:[1,1,0] op_sel_hi:[0,1,1] neg_lo:[1,0,0]")
                tw[(m, j)] = w
            P.free(vk)
    if dst[0] == 'lds':
        wa = []
        for m in range(nb):
            vb = P.alloc(); vt = P.alloc()
            E(f"v_add_u32 v{vb}, {m*T}, v{vI}")
            if p > 1:
                E(f"v_and_b32 v{vt}, 0x{p-1:x}, v{vb}")
                E(f"v_sub_u32 v{vb}, v{vb}, v{vt}")
                E(f"v_lshl_add_u32 v{vb}, v{vb}, {int(math.log2(R))}, v{vt}")
            else:
                E(f"v_lshlrev_b32 v{vb}, {int(math.log2(R))}, v{vb}")
            E(f"v_lshrrev_b32 v{vt}, 4, v{vb}")
            E(f"v_add_u32 v{vb}, v{vb}, v{vt}")
            E(f"v_lshl_add_u32 v{vb}, v{vb}, 3, v{vBase}")
            P.free(vt)
            wa.append(vb)
    E.flush()
    if src[0] == 'lds':
        E0("s_waitcnt lgkmcnt(0)")
    else:
        E0("s_nop 0")
    out = {}
    for m in range(nb):
        regs = []
        for j in range(R):
            u = data[(m, j)]
            if p > 1 and j > 0:
                w = tw[(m, j)]
                u = cmul_pk(E, P, u, w)
                P.free_n(w, 2)
            regs.append(u)
        o = dft_pk(E, P, regs, sign)
        for j in range(R):
            out[(m, j)] = o[j]
    if dst[0] == 'lds':
        for m in range(nb):
            offs = None
            for i in range(T):
                b = i + m * T
                k = b % p
                base = (b - k) * R + k
                o = [pad4(base + j * p) - pad4(base) for j in range(R)]
                if offs is None: offs = o
                assert offs == o, (N, R, p, m, i)
            for j in range(R):
                r = out[(m, j)]
                E(f"ds_write_b64 v{wa[m]}, {pr(r)} offset:{dst[1] + offs[j]*8}")
                P.free_n(r, 2)
            P.free(wa[m])
        E.flush()
        return None
    E.flush()
    return out
```

```python
from asmlib import *
from fftlib import cmul_pk, pr
from fftlib2 import fft_pass, consts, pad4
from gen_fft import (srd_from, wave_allsum, bf16r, transpose_tile_wave, XT_OFF, XT_BYTES, WT_OFF, WT_BYTES,
                     H_OFF, HN_OFF, ACT_OFF, W1T_OFF, W2T_OFF, XB)
import os
FDBG = os.environ.get('FDBG', '')

XP = 16384 + 256
WP = 8192 + 256
XT_BYTES = 513 * XP
WT_BYTES = 513 * WP
FBW = pad4(1024) * 8

STAMP = 'stamp' in FDBG
def stamp_init(E, wg):
    if not STAMP: return
    E("s_load_dwordx2 s[84:85], s[0:1], 64")
    E("s_waitcnt lgkmcnt(0)")
    E("s_mov_b32 s88, s84"); E("s_mov_b32 s89, s85"); E("s_mov_b32 s90, 256"); E("s_mov_b32 s91, 0x00020000")
    E(f"s_cmp_eq_u32 s2, {wg}")
    E("s_cselect_b32 s90, 256, 0")
    E("v_mov_b32 v126, 0")
def stamp(E, i):
    if not STAMP: return
    E("s_memtime s[86:87]")
    E("s_waitcnt lgkmcnt(0)")
    E("v_mov_b32 v127, s86")
    E(f"buffer_store_dword v127, v126, s[88:91], 0 offen offset:{i*4}")

def allsum2(E, va, vb, ta, tb, st):
    for sh in (1, 2, 4, 8):
        E(f"v_add_f32_dpp v{va}, v{va}, v{va} row_shr:{sh} row_mask:0xf bank_mask:0xf bound_ctrl:0")
        E(f"v_add_f32_dpp v{vb}, v{vb}, v{vb} row_shr:{sh} row_mask:0xf bank_mask:0xf bound_ctrl:0")
        E("s_nop 0")
    E(f"v_add_f32_dpp v{va}, v{va}, v{va} row_bcast:15 row_mask:0xa bank_mask:0xf")
    E(f"v_add_f32_dpp v{vb}, v{vb}, v{vb} row_bcast:15 row_mask:0xa bank_mask:0xf")
    E("s_nop 0")
    E(f"v_add_f32_dpp v{va}, v{va}, v{va} row_bcast:31 row_mask:0xc bank_mask:0xf")
    E(f"v_add_f32_dpp v{vb}, v{vb}, v{vb} row_bcast:31 row_mask:0xc bank_mask:0xf")
    E("s_nop 0")
    E(f"v_readlane_b32 s{st}, v{va}, 63")
    E(f"v_readlane_b32 s{st+1}, v{vb}, 63")
    E("s_nop 1")
    E(f"v_mov_b32 v{va}, s{st}")
    E(f"v_mov_b32 v{vb}, s{st+1}")

def layernorm2(E, P, prs, st):
    s = P.alloc_n(2, 2); t = P.alloc_n(2, 2); m = P.alloc_n(2, 2)
    E(f"v_pk_add_f32 {pr(s)}, {pr(prs[0])}, {pr(prs[1])}")
    for r in prs[2:]:
        E(f"v_pk_add_f32 {pr(s)}, {pr(s)}, {pr(r)}")
    E("s_nop 1")
    allsum2(E, s, s + 1, t, t + 1, st)
    E(f"v_mul_f32 v{m}, 0x{f2u(1.0/1024):08x}, v{s}")
    E(f"v_mul_f32 v{m+1}, 0x{f2u(1.0/1024):08x}, v{s+1}")
    E(f"v_pk_add_f32 {pr(t)}, {pr(prs[0])}, {pr(m)} neg_lo:[0,1] neg_hi:[0,1]")
    E(f"v_pk_mul_f32 {pr(s)}, {pr(t)}, {pr(t)}")
    for r in prs[1:]:
        E(f"v_pk_add_f32 {pr(t)}, {pr(r)}, {pr(m)} neg_lo:[0,1] neg_hi:[0,1]")
        E(f"v_pk_fma_f32 {pr(s)}, {pr(t)}, {pr(t)}, {pr(s)}")
    E("s_nop 1")
    allsum2(E, s, s + 1, t, t + 1, st)
    for h in (0, 1):
        E(f"v_mul_f32 v{s+h}, 0x{f2u(1.0/1024):08x}, v{s+h}")
        bf16r(E, s + h)
        E(f"v_add_f32 v{s+h}, 0x{f2u(1e-5):08x}, v{s+h}")
        bf16r(E, s + h)
        E(f"v_sqrt_f32 v{s+h}, v{s+h}")
        E("s_nop 0")
        bf16r(E, s + h)
        E(f"v_rcp_f32 v{s+h}, v{s+h}")
        bf16r(E, m + h)
    for r in prs:
        E(f"v_pk_add_f32 {pr(r)}, {pr(r)}, {pr(m)} neg_lo:[0,1] neg_hi:[0,1]")
        E(f"v_cvt_pk_bf16_f32 v{t}, v{r}, v{r+1}")
        E(f"v_lshlrev_b32 v{r}, 16, v{t}")
        E(f"v_and_b32 v{r+1}, 0xffff0000, v{t}")
        E(f"v_pk_mul_f32 {pr(r)}, {pr(r)}, {pr(s)}")
        E(f"v_cvt_pk_bf16_f32 v{t}, v{r}, v{r+1}")
        E(f"v_lshlrev_b32 v{r}, 16, v{t}")
        E(f"v_and_b32 v{r+1}, 0xffff0000, v{t}")
    P.free_n(s, 2); P.free_n(t, 2); P.free_n(m, 2)

def unpack_rows(E, prs, ra, rb):
    for q in range(8):
        E(f"v_lshlrev_b32 v{prs[2*q]}, 16, v{ra+q}")
        E(f"v_and_b32 v{prs[2*q+1]}, 0xffff0000, v{ra+q}")
        E(f"v_lshlrev_b32 v{prs[2*q]+1}, 16, v{rb+q}")
        E(f"v_and_b32 v{prs[2*q+1]+1}, 0xffff0000, v{rb+q}")

def row_lds_addr(E, vdst, vlane, vwbase):
    E(f"v_lshrrev_b32 v{vdst}, 1, v{vlane}")
    E(f"v_lshl_add_u32 v{vdst}, v{vlane}, 3, v{vdst}")
    E(f"v_lshl_add_u32 v{vdst}, v{vdst}, 3, v{vwbase}")

def gen_k1(E):
    NTW = 256
    NT = 0
    E.label("k1_kernel")
    E(f"s_cmp_ge_u32 s2, {256+NTW+NT}")
    E("s_cbranch_scc1 k1_end")
    E("s_load_dwordx4 s[4:7], s[0:1], 0")
    E("s_load_dwordx2 s[8:9], s[0:1], 16")
    E("s_load_dwordx2 s[10:11], s[0:1], 32")
    E("s_load_dwordx2 s[12:13], s[0:1], 72")
    E("s_waitcnt lgkmcnt(0)")
    E("s_cmp_ge_u32 s2, 256")
    E("s_cbranch_scc1 k1_wt")
    srd_from(E, 16, 4, 0, XB)
    srd_from(E, 28, 12, XT_OFF, XT_BYTES)
    P = Pool(24, 124)
    stamp_init(E, 100); stamp(E, 0)
    E("v_and_b32 v1, 63, v0")
    E("v_lshrrev_b32 v2, 6, v0")
    E("s_lshl_b32 s3, s2, 3")
    E("v_lshlrev_b32 v3, 1, v2")
    E("v_add_u32 v3, s3, v3")
    E("v_lshlrev_b32 v3, 11, v3")
    E("v_lshl_add_u32 v3, v1, 4, v3")
    E("buffer_load_dwordx4 v[8:11], v3, s[16:19], 0 offen")
    E("buffer_load_dwordx4 v[12:15], v3, s[16:19], 0 offen offset:1024")
    E("buffer_load_dwordx4 v[16:19], v3, s[16:19], 0 offen offset:2048")
    E("buffer_load_dwordx4 v[20:23], v3, s[16:19], 0 offen offset:3072")
    consts(E)
    vBase = P.alloc(); vRd = P.alloc(); vR = P.alloc()
    E(f"v_mul_u32_u24 v{vBase}, {FBW}, v2")
    E(f"v_lshrrev_b32 v{vRd}, 4, v1")
    E(f"v_add_u32 v{vRd}, v{vRd}, v1")
    E(f"v_lshl_add_u32 v{vRd}, v{vRd}, 3, v{vBase}")
    row_lds_addr(E, vR, 1, vBase)
    prs = [P.alloc_n(2, 2) for _ in range(16)]
    E("s_waitcnt vmcnt(0)")
    stamp(E, 1)
    unpack_rows(E, prs, 8, 16)
    layernorm2(E, P, prs, 42)
    stamp(E, 2)
    for e in range(8):
        E(f"ds_write_b64 v{vR}, {pr(prs[e])} offset:{e*8}")
        E(f"ds_write_b64 v{vR}, {pr(prs[8+e])} offset:{pad4(512)*8 + e*8}")
    for r in prs: P.free_n(r, 2)
    p = 1
    si = 3
    for R in (16, 16, 4):
        fft_pass(E, P, 1024, R, p, -1, 1, ('lds', 0), ('lds', 0), vBase, vRd)
        stamp(E, si); si += 1
        p *= R
    E("s_waitcnt lgkmcnt(0)")
    E("s_barrier")
    stamp(E, 6)
    vF = P.alloc(); vK = P.alloc(); vA = P.alloc(); vG = P.alloc(); vt = P.alloc()
    E(f"v_and_b32 v{vF}, 3, v0")
    E(f"v_lshrrev_b32 v{vK}, 2, v0")
    E(f"v_mul_u32_u24 v{vF}, {FBW}, v{vF}")
    E(f"v_lshrrev_b32 v{vt}, 4, v{vK}")
    E(f"v_add_u32 v{vt}, v{vt}, v{vK}")
    E(f"v_lshl_add_u32 v{vA}, v{vt}, 3, v{vF}")
    E(f"v_mul_u32_u24 v{vG}, {XP}, v{vK}")
    E(f"v_and_b32 v{vt}, 3, v0")
    E(f"v_lshl_add_u32 v{vG}, v{vt}, 4, v{vG}")
    E("s_lshl_b32 s41, s3, 3")
    zs = []
    def sep_read(m):
        vB = P.alloc()
        E(f"v_add_u32 v{vt}, {64*m}, v{vK}")
        E(f"v_sub_u32 v{vt}, 1024, v{vt}")
        E(f"v_and_b32 v{vt}, 1023, v{vt}")
        E(f"v_lshrrev_b32 v{vB}, 4, v{vt}")
        E(f"v_add_u32 v{vt}, v{vt}, v{vB}")
        E(f"v_lshl_add_u32 v{vB}, v{vt}, 3, v{vF}")
        z = P.alloc_n(2, 2); y = P.alloc_n(2, 2)
        E(f"ds_read_b64 {pr(z)}, v{vA} offset:{pad4(64*m)*8}")
        E(f"ds_read_b64 {pr(y)}, v{vB}")
        P.free(vB)
        return z, y
    def sep_store(m, z, y):
        o = P.alloc_n(4, 4)
        E(f"v_add_f32 v{o}, v{z}, v{y}")
        E(f"v_sub_f32 v{o+1}, v{z+1}, v{y+1}")
        E(f"v_add_f32 v{o+2}, v{z+1}, v{y+1}")
        E(f"v_sub_f32 v{o+3}, v{y}, v{z}")
        E(f"s_add_u32 s42, s41, {64*m*XP}")
        E(f"buffer_store_dwordx4 v[{o}:{o+3}], v{vG}, s[28:31], s42 offen")
        P.free_n(z, 2); P.free_n(y, 2)
        return o
    zz = [sep_read(m) for m in range(8)]
    E("s_waitcnt lgkmcnt(0)")
    stamp(E, 7)
    oo = [sep_store(m, *zz[m]) for m in range(8)]
    if STAMP: E("s_waitcnt vmcnt(0)")
    stamp(E, 8)
    E("v_cmp_gt_u32 vcc, 4, v0")
    E("s_and_saveexec_b64 s[44:45], vcc")
    E("s_cbranch_execz k1_end")
    z, y = sep_read(8)
    E("s_waitcnt lgkmcnt(0)")
    sep_store(8, z, y)
    E("s_branch k1_end")
    E.label("k1_wt")
    srd_from(E, 20, 6, 0, 2048*513*2)
    srd_from(E, 24, 8, 0, 2048*513*2)
    srd_from(E, 32, 12, WT_OFF, WT_BYTES)
    E("s_sub_u32 s3, s2, 256")
    E("s_lshl_b32 s3, s3, 3")
    E("s_mul_i32 s40, s3, 1026")
    E("v_lshlrev_b32 v4, 1, v0")
    for c in range(2):
        for r in range(8):
            E(f"s_add_u32 s41, s40, {r*1026 + c*512}")
            E(f"buffer_load_ushort v{8+c*16+r}, v4, s[20:23], s41 offen")
            E(f"buffer_load_ushort v{16+c*16+r}, v4, s[24:27], s41 offen")
    E(f"v_mul_u32_u24 v5, {WP}, v0")
    E("s_lshl_b32 s41, s3, 2")
    E(f"s_add_u32 s42, s41, {256*WP}")
    E("s_waitcnt vmcnt(0)")
    for c in range(2):
        for r in range(8):
            E(f"v_lshl_or_b32 v{40+c*8+r}, v{16+c*16+r}, 16, v{8+c*16+r}")
    E("buffer_store_dwordx4 v[40:43], v5, s[32:35], s41 offen")
    E("buffer_store_dwordx4 v[44:47], v5, s[32:35], s41 offen offset:16")
    E("buffer_store_dwordx4 v[48:51], v5, s[32:35], s42 offen")
    E("buffer_store_dwordx4 v[52:55], v5, s[32:35], s42 offen offset:16")
    E("v_cmp_gt_u32 vcc, 8, v0")
    E("s_and_saveexec_b64 s[44:45], vcc")
    E("s_cbranch_execz k1_end")
    E("v_mul_u32_u24 v4, 1026, v0")
    E("v_add_u32 v4, 1024, v4")
    E("buffer_load_ushort v8, v4, s[20:23], s40 offen")
    E("buffer_load_ushort v9, v4, s[24:27], s40 offen")
    E("v_lshlrev_b32 v4, 2, v0")
    E(f"v_add_u32 v4, 0x{512*WP:x}, v4")
    E("s_waitcnt vmcnt(0)")
    E("v_lshl_or_b32 v8, v9, 16, v8")
    E("buffer_store_dword v8, v4, s[32:35], s41 offen")
    E("s_branch k1_end")
    E.label("k1_end")
    E("s_endpgm")
    return (256 + NTW + NT, 256, 4 * FBW)

FB2 = pad4(2048) * 8

def gen_k2(E):
    NT = 448
    E.label("k2_kernel")
    E(f"s_cmp_ge_u32 s2, {513+NT}")
    E("s_cbranch_scc1 k2_end")
    E("s_load_dwordx2 s[10:11], s[0:1], 48")
    E("s_load_dwordx2 s[12:13], s[0:1], 72")
    E("s_waitcnt lgkmcnt(0)")
    E("s_cmp_ge_u32 s2, 513")
    E("s_cbranch_scc1 k2_tr")
    srd_from(E, 28, 12, XT_OFF, XT_BYTES)
    srd_from(E, 32, 12, WT_OFF, WT_BYTES)
    P = Pool(8, 124)
    vI = 0
    stamp_init(E, 100); stamp(E, 0)
    vBase = P.alloc(); vRd = P.alloc(); vG = P.alloc()
    E(f"s_mul_i32 s3, s2, {XP}")
    E(f"s_mul_i32 s4, s2, {WP}")
    E(f"v_lshlrev_b32 v{vG}, 3, v0")
    data = {}
    for j in range(16):
        r = P.alloc_n(2, 2)
        E(f"s_add_u32 s5, s3, {j*1024}")
        E(f"buffer_load_dwordx2 {pr(r)}, v{vG}, s[28:31], s5 offen")
        data[(0, j)] = r
    wreg = {}
    vW = P.alloc()
    E(f"v_lshlrev_b32 v{vW}, 2, v0")
    for m in range(2):
        for j in range(8):
            w = P.alloc()
            off = (m * 128 + j * 256) * 4
            E(f"s_add_u32 s5, s4, {off}")
            E(f"buffer_load_dword v{w}, v{vW}, s[32:35], s5 offen")
            wreg[(m, j)] = w
    P.free(vW)
    consts(E)
    E(f"v_mov_b32 v{vBase}, 0")
    E(f"v_lshrrev_b32 v{vRd}, 4, v0")
    E(f"v_add_u32 v{vRd}, v{vRd}, v0")
    E(f"v_lshlrev_b32 v{vRd}, 3, v{vRd}")
    E("s_waitcnt vmcnt(16)")
    def bar():
        E("s_waitcnt lgkmcnt(0)")
        E("s_barrier")
    fp = lambda R, p, sg, src, dst: fft_pass(E, P, 2048, R, p, sg, vI, src, dst, vBase, vRd)
    stamp(E, 1)
    fp(16, 1, -1, ('regs', data), ('lds', 0)); bar()
    stamp(E, 2)
    fp(16, 16, -1, ('lds', 0), ('lds', FB2)); bar()
    stamp(E, 3)
    out = fp(8, 256, -1, ('lds', FB2), ('regs',))
    stamp(E, 4)
    E("s_waitcnt vmcnt(0)")
    scale = f2u(1.0 / (2048 * 1024 * 2))
    for key in out:
        w = wreg[key]
        c = P.alloc_n(2, 2)
        E(f"v_lshlrev_b32 v{c}, 16, v{w}")
        E(f"v_and_b32 v{c+1}, 0xffff0000, v{w}")
        E(f"v_mul_f32 v{c}, 0x{scale:08x}, v{c}")
        E(f"v_mul_f32 v{c+1}, 0x{scale:08x}, v{c+1}")
        out[key] = cmul_pk(E, P, out[key], c)
        P.free_n(c, 2); P.free(w)
    stamp(E, 5)
    fp(8, 1, +1, ('regs', out), ('lds', 0)); bar()
    stamp(E, 6)
    fp(16, 8, +1, ('lds', 0), ('lds', FB2)); bar()
    stamp(E, 7)
    out = fp(16, 128, +1, ('lds', FB2), ('regs',))
    stamp(E, 8)
    for j in range(16):
        r = out[(0, j)]
        E(f"s_add_u32 s5, s3, {j*1024}")
        E(f"buffer_store_dwordx2 {pr(r)}, v{vG}, s[28:31], s5 offen")
    if STAMP:
        E("s_waitcnt vmcnt(0)")
    stamp(E, 9)
    E("s_branch k2_end")
    E.label("k2_tr")
    srd_from(E, 16, 10, 0, 1024*3584*2)
    srd_from(E, 20, 12, W2T_OFF, 1024*3584*2)
    E("v_lshrrev_b32 v1, 6, v0")
    E("s_nop 0")
    E("v_readfirstlane_b32 s40, v1")
    E("s_sub_u32 s41, s2, 513")
    E("s_lshl_b32 s41, s41, 1")
    E("s_add_u32 s41, s41, s40")
    transpose_tile_wave(E, 16, 20, 1024, 3584, 16, 41, 8)
    E.label("k2_end")
    E("s_endpgm")
    return (513 + NT, 128, 2 * FB2)

def gen_k3(E):
    RAW = 4 * FBW
    E.label("k3_kernel")
    E("s_cmp_ge_u32 s2, 480")
    E("s_cbranch_scc1 k3_end")
    E("s_load_dwordx2 s[4:5], s[0:1], 0")
    E("s_load_dwordx2 s[10:11], s[0:1], 32")
    E("s_load_dwordx2 s[12:13], s[0:1], 72")
    E("s_waitcnt lgkmcnt(0)")
    E("s_cmp_ge_u32 s2, 256")
    E("s_cbranch_scc1 k3_tr")
    srd_from(E, 16, 4, 0, XB)
    srd_from(E, 28, 12, XT_OFF, XT_BYTES)
    srd_from(E, 20, 12, H_OFF, XB)
    srd_from(E, 24, 12, HN_OFF, XB)
    P = Pool(24, 128)
    E("s_lshl_b32 s3, s2, 3")
    E("v_and_b32 v1, 63, v0")
    E("v_lshrrev_b32 v2, 6, v0")
    vG = P.alloc(); vL = P.alloc(); vt = P.alloc()
    E(f"v_lshrrev_b32 v{vG}, 2, v0")
    E(f"v_mul_u32_u24 v{vG}, {XP}, v{vG}")
    E(f"v_and_b32 v{vt}, 3, v0")
    E(f"v_lshl_add_u32 v{vG}, v{vt}, 4, v{vG}")
    E(f"v_lshlrev_b32 v{vL}, 4, v0")
    E(f"v_add_u32 v{vL}, {RAW}, v{vL}")
    E("s_lshl_b32 s41, s3, 3")
    rr = [P.alloc_n(4, 4) for _ in range(9)]
    for m in range(8):
        E(f"s_add_u32 s42, s41, {64*m*XP}")
        E(f"buffer_load_dwordx4 v[{rr[m]}:{rr[m]+3}], v{vG}, s[28:31], s42 offen")
    E("v_cmp_gt_u32 vcc, 4, v0")
    E("s_and_saveexec_b64 s[44:45], vcc")
    E("s_cbranch_execz k3_s512")
    E(f"s_add_u32 s42, s41, {512*XP}")
    E(f"buffer_load_dwordx4 v[{rr[8]}:{rr[8]+3}], v{vG}, s[28:31], s42 offen")
    E("s_waitcnt vmcnt(0)")
    E(f"ds_write_b128 v{vL}, v[{rr[8]}:{rr[8]+3}] offset:{8*4096}")
    E.label("k3_s512")
    E("s_or_b64 exec, exec, s[44:45]")
    E("v_lshlrev_b32 v3, 1, v2")
    E("v_add_u32 v3, s3, v3")
    E("v_lshlrev_b32 v3, 11, v3")
    E("v_lshl_add_u32 v3, v1, 4, v3")
    E("buffer_load_dwordx4 v[8:11], v3, s[16:19], 0 offen")
    E("buffer_load_dwordx4 v[12:15], v3, s[16:19], 0 offen offset:1024")
    E("buffer_load_dwordx4 v[16:19], v3, s[16:19], 0 offen offset:2048")
    E("buffer_load_dwordx4 v[20:23], v3, s[16:19], 0 offen offset:3072")
    E("s_waitcnt vmcnt(4)")
    for m in range(8):
        E(f"ds_write_b128 v{vL}, v[{rr[m]}:{rr[m]+3}] offset:{m*4096}")
    for r in rr: P.free_n(r, 4)
    P.free(vG, vL, vt)
    consts(E)
    vBase = P.alloc(); vRd = P.alloc(); vR = P.alloc()
    E(f"v_mul_u32_u24 v{vBase}, {FBW}, v2")
    E(f"v_lshrrev_b32 v{vRd}, 4, v1")
    E(f"v_add_u32 v{vRd}, v{vRd}, v1")
    E(f"v_lshl_add_u32 v{vRd}, v{vRd}, 3, v{vBase}")
    row_lds_addr(E, vR, 1, vBase)
    vP = P.alloc(); vN = P.alloc()
    E(f"v_lshlrev_b32 v{vP}, 6, v1")
    E(f"v_lshl_add_u32 v{vP}, v2, 4, v{vP}")
    E(f"v_add_u32 v{vP}, {RAW}, v{vP}")
    E(f"v_sub_u32 v{vN}, 64, v1")
    E(f"v_lshlrev_b32 v{vN}, 6, v{vN}")
    E(f"v_lshl_add_u32 v{vN}, v2, 4, v{vN}")
    E(f"v_add_u32 v{vN}, {RAW}, v{vN}")
    E("s_waitcnt lgkmcnt(0)")
    E("s_barrier")
    data = {}
    E("v_cmp_ne_u32 vcc, 0, v1")
    for half in range(2):
        raw = []
        for j in range(half * 8, half * 8 + 8):
            r = P.alloc_n(4, 4)
            if j < 8:
                E(f"ds_read_b128 v[{r}:{r+3}], v{vP} offset:{j*4096}")
            else:
                E(f"ds_read_b128 v[{r}:{r+3}], v{vN} offset:{(15-j)*4096}")
            raw.append((j, r))
        E("s_waitcnt lgkmcnt(0)")
        for j, r in raw:
            if j in (0, 8):
                E(f"v_cndmask_b32 v{r+1}, 0, v{r+1}, vcc")
                E(f"v_cndmask_b32 v{r+3}, 0, v{r+3}, vcc")
            z = P.alloc_n(2, 2)
            if j < 8:
                E(f"v_sub_f32 v{z}, v{r}, v{r+3}")
                E(f"v_add_f32 v{z+1}, v{r+1}, v{r+2}")
            else:
                E(f"v_add_f32 v{z}, v{r}, v{r+3}")
                E(f"v_sub_f32 v{z+1}, v{r+2}, v{r+1}")
            P.free_n(r, 4)
            data[(0, j)] = z
    P.free(vP, vN)
    fft_pass(E, P, 1024, 16, 1, +1, 1, ('regs', data), ('lds', 0), vBase, vRd)
    fft_pass(E, P, 1024, 16, 16, +1, 1, ('lds', 0), ('lds', 0), vBase, vRd)
    fft_pass(E, P, 1024, 4, 256, +1, 1, ('lds', 0), ('lds', 0), vBase, vRd)
    ys = [P.alloc_n(2, 2) for _ in range(16)]
    for e in range(8):
        E(f"ds_read_b64 {pr(ys[e])}, v{vR} offset:{e*8}")
        E(f"ds_read_b64 {pr(ys[8+e])}, v{vR} offset:{pad4(512)*8 + e*8}")
    prs = [P.alloc_n(2, 2) for _ in range(16)]
    E("s_waitcnt vmcnt(0)")
    unpack_rows(E, prs, 8, 16)
    E("s_waitcnt lgkmcnt(0)")
    t = P.alloc()
    for e in range(16):
        y = ys[e]; xx = prs[e]
        E(f"v_cvt_pk_bf16_f32 v{t}, v{y}, v{y+1}")
        E(f"v_lshlrev_b32 v{y}, 16, v{t}")
        E(f"v_and_b32 v{y+1}, 0xffff0000, v{t}")
        E(f"v_pk_add_f32 {pr(xx)}, {pr(xx)}, {pr(y)}")
        E(f"v_cvt_pk_bf16_f32 v{t}, v{xx}, v{xx+1}")
        E(f"v_lshlrev_b32 v{xx}, 16, v{t}")
        E(f"v_and_b32 v{xx+1}, 0xffff0000, v{t}")
        P.free_n(y, 2)
    P.free(t)
    def pack_store(srd):
        for q in range(8):
            E(f"v_cvt_pk_bf16_f32 v{8+q}, v{prs[2*q]}, v{prs[2*q+1]}")
            E(f"v_cvt_pk_bf16_f32 v{16+q}, v{prs[2*q]+1}, v{prs[2*q+1]+1}")
        E(f"buffer_store_dwordx4 v[8:11], v3, s[{srd}:{srd+3}], 0 offen")
        E(f"buffer_store_dwordx4 v[12:15], v3, s[{srd}:{srd+3}], 0 offen offset:1024")
        E(f"buffer_store_dwordx4 v[16:19], v3, s[{srd}:{srd+3}], 0 offen offset:2048")
        E(f"buffer_store_dwordx4 v[20:23], v3, s[{srd}:{srd+3}], 0 offen offset:3072")
    pack_store(20)
    layernorm2(E, P, prs, 42)
    pack_store(24)
    E("s_branch k3_end")
    E.label("k3_tr")
    srd_from(E, 16, 10, 0, 1024*3584*2)
    srd_from(E, 20, 12, W1T_OFF, 1024*3584*2)
    E("v_lshrrev_b32 v1, 6, v0")
    E("s_nop 0")
    E("v_readfirstlane_b32 s40, v1")
    E("s_sub_u32 s41, s2, 256")
    E("s_lshl_b32 s41, s41, 2")
    E("s_add_u32 s41, s41, s40")
    transpose_tile_wave(E, 16, 20, 3584, 1024, 56, 41, 8)
    E.label("k3_end")
    E("s_endpgm")
    return (480, 256, RAW + 513 * 64)
```

```python
from asmlib import *
from gen_fft import srd_from, H_OFF, HN_OFF, ACT_OFF, W1T_OFF, W2T_OFF, XB, bf16r
import os

PART_OFF = 64 << 20
def gen_gemm(E, name, TM, TN, K, M, N, A_off, B_off, xcd_tm, xcd_tn, epi, NS=3, dbg='', splitk=1):
    ld2 = K * 2
    NK = K // 64 // splitk
    SS = (TM + TN) * 128
    WTM, WTN = TM // 2, TN // 2
    NT, NU = WTM // 16, WTN // 16
    GA, GB = TM // 32, TN // 32
    ND = GA + GB
    ntm, ntn = M // TM, N // TN
    nwg = ntm * ntn * splitk
    assert nwg == 256
    E.label(name)
    E(f"s_cmp_ge_u32 s2, {nwg}")
    E(f"s_cbranch_scc1 {name}_end")
    E("s_load_dwordx2 s[4:5], s[0:1], 40")
    E("s_load_dwordx2 s[6:7], s[0:1], 56")
    E("s_load_dwordx2 s[12:13], s[0:1], 72")
    if splitk == 1:
        gx = ntn // xcd_tn
        E("s_and_b32 s40, s2, 7")
        E("s_lshr_b32 s41, s2, 3")
        E(f"s_lshr_b32 s42, s40, {int(math.log2(gx))}")
        E(f"s_and_b32 s43, s40, {gx-1}")
        E(f"s_lshr_b32 s44, s41, {int(math.log2(xcd_tn))}")
        E(f"s_and_b32 s45, s41, {xcd_tn-1}")
        E(f"s_lshl_b32 s42, s42, {int(math.log2(xcd_tm))}")
        E("s_add_u32 s42, s42, s44")
        E(f"s_lshl_b32 s43, s43, {int(math.log2(xcd_tn))}")
        E("s_add_u32 s43, s43, s45")
    else:
        E("s_load_dwordx2 s[8:9], s[0:1], 64")
        E("s_and_b32 s66, s2, 1")
        E("s_lshr_b32 s67, s2, 1")
        E(f"s_lshr_b32 s42, s67, {int(math.log2(ntn))}")
        E(f"s_and_b32 s43, s67, {ntn-1}")
    E("v_lshrrev_b32 v1, 6, v0")
    E("v_and_b32 v2, 63, v0")
    E("s_nop 0")
    E("v_readfirstlane_b32 s46, v1")
    E("s_waitcnt lgkmcnt(0)")
    E("s_cmp_ge_u32 s46, 4")
    E(f"s_cbranch_scc1 {name}_prod")
    E("v_lshrrev_b32 v4, 4, v2")
    E("v_and_b32 v5, 7, v2")
    E("v_xor_b32 v4, v4, v5")
    E("v_and_b32 v5, 15, v2")
    E("v_lshlrev_b32 v5, 7, v5")
    E("v_lshl_add_u32 v4, v4, 4, v5")
    E("s_lshr_b32 s58, s46, 1")
    E("s_and_b32 s59, s46, 1")
    E(f"s_mul_i32 s60, s58, {WTM*128}")
    E(f"s_mul_i32 s61, s59, {WTN*128}")
    E(f"s_add_u32 s61, s61, {TM*128}")
    E("v_add_u32 v6, s60, v4")
    E("v_xor_b32 v7, 64, v6")
    E("v_add_u32 v8, s61, v4")
    E("v_xor_b32 v9, 64, v8")
    SR = 80
    for st in range(NS):
        E(f"s_mov_b32 s{SR+st}, {st*SS}")
    F0A = 16; F0B = F0A + 4 * NT; F1A = F0B + 4 * NU; F1B = F1A + 4 * NT
    NACC = NT * NU * 4
    for r in range(NACC):
        E(f"v_accvgpr_write_b32 a{r}, 0")
    def read_frags(FA, FB, va, vb):
        if 'nolds' in dbg: return
        for t in range(NT):
            E(f"ds_read_b128 v[{FA+4*t}:{FA+4*t+3}], v{va} offset:{t*2048}")
        for u in range(NU):
            E(f"ds_read_b128 v[{FB+4*u}:{FB+4*u+3}], v{vb} offset:{u*2048}")
    def mfmas(FA, FB):
        if 'nomfma' in dbg: return
        for t in range(NT):
            for u in range(NU):
                a = (t * NU + u) * 4
                E(f"v_mfma_f32_16x16x32_bf16 a[{a}:{a+3}], v[{FB+4*u}:{FB+4*u+3}], v[{FA+4*t}:{FA+4*t+3}], a[{a}:{a+3}]")
    NF = NT + NU
    def frag_list(FA, FB, va, vb):
        L = []
        if 'nolds' in dbg: return L
        L.append(f"ds_read_b128 v[{FA}:{FA+3}], v{va} offset:0")
        for u in range(NU):
            L.append(f"ds_read_b128 v[{FB+4*u}:{FB+4*u+3}], v{vb} offset:{u*2048}")
        for t in range(1, NT):
            L.append(f"ds_read_b128 v[{FA+4*t}:{FA+4*t+3}], v{va} offset:{t*2048}")
        return L
    def mfma_list(FA, FB):
        L = []
        if 'nomfma' in dbg: return L
        for t in range(NT):
            for u in range(NU):
                a = (t * NU + u) * 4
                L.append(f"v_mfma_f32_16x16x32_bf16 a[{a}:{a+3}], v[{FB+4*u}:{FB+4*u+3}], v[{FA+4*t}:{FA+4*t+3}], a[{a}:{a+3}]")
        return L
    def interleave(ms, rs, first=1, step=2):
        out = []
        ri = 0
        for i, m in enumerate(ms):
            out.append(m)
            if i >= first and (i - first) % step == 0 and ri < len(rs):
                out.append(rs[ri]); ri += 1
        out += rs[ri:]
        return out
    E("s_barrier")
    E(f"v_add_u32 v10, s{SR}, v6")
    E(f"v_add_u32 v12, s{SR}, v8")
    for l in frag_list(F0A, F0B, 10, 12): E(l)
    E(f"v_add_u32 v11, s{SR}, v7")
    E(f"v_add_u32 v13, s{SR}, v9")
    STEP = max(1, (NT * NU - 2) // NF)
    def cbody(last):
        E("s_waitcnt lgkmcnt(0)")
        for l in interleave(mfma_list(F0A, F0B), frag_list(F1A, F1B, 11, 13), 0, STEP): E(l)
        if not last:
            E(f"s_mov_b32 s62, s{SR}")
            for st in range(NS - 1):
                E(f"s_mov_b32 s{SR+st}, s{SR+st+1}")
            E(f"s_mov_b32 s{SR+NS-1}, s62")
            E(f"v_add_u32 v10, s{SR}, v6")
            E(f"v_add_u32 v12, s{SR}, v8")
            E("s_waitcnt lgkmcnt(0)")
            E("s_barrier")
            for l in interleave(mfma_list(F1A, F1B), frag_list(F0A, F0B, 10, 12), 0, STEP): E(l)
            E(f"v_add_u32 v11, s{SR}, v7")
            E(f"v_add_u32 v13, s{SR}, v9")
        else:
            E("s_waitcnt lgkmcnt(0)")
            for l in mfma_list(F1A, F1B): E(l)
    E(f"s_mov_b32 s63, {NK-1}")
    E.label(f"{name}_cloop")
    cbody(False)
    E("s_sub_u32 s63, s63, 1")
    E("s_cmp_lg_u32 s63, 0")
    E(f"s_cbranch_scc1 {name}_cloop")
    cbody(True)
    if splitk > 1:
        E("s_nop 15")
        srd_from(E, 32, 12, PART_OFF, 128 * TM * TN * 4)
        E(f"s_mul_i32 s60, s67, {TM*TN*4}")
        E(f"s_mul_i32 s61, s46, {NT*NU*1024}")
        E("s_add_u32 s60, s60, s61")
        E("v_lshlrev_b32 v4, 4, v2")
        E("s_cmp_eq_u32 s66, 1")
        E(f"s_cbranch_scc1 {name}_rd")
        for q in range(NT * NU):
            b = 16 + (q % 16) * 4
            for r in range(4):
                E(f"v_accvgpr_read_b32 v{b+r}, a{q*4+r}")
            E(f"s_add_u32 s61, s60, {q*1024}")
            E(f"buffer_store_dwordx4 v[{b}:{b+3}], v4, s[32:35], s61 offen sc1")
        E("s_waitcnt vmcnt(0)")
        E("s_barrier")
        E("s_cmp_lg_u32 s46, 0")
        E(f"s_cbranch_scc1 {name}_end")
        srd_from(E, 36, 8, 0, 256)
        E("v_mov_b32 v5, 1")
        E("v_mov_b32 v6, s67")
        E("s_mov_b64 exec, 1")
        E("buffer_store_byte v5, v6, s[36:39], 0 offen sc1")
        E(f"s_branch {name}_end")
        E.label(f"{name}_rd")
        E("s_barrier")
        for q0 in range(0, NT * NU, 16):
            for q in range(q0, min(q0 + 16, NT * NU)):
                b = 16 + (q % 16) * 4
                E(f"s_add_u32 s61, s60, {q*1024}")
                E(f"buffer_load_dwordx4 v[{b}:{b+3}], v4, s[32:35], s61 offen sc1")
            E("s_waitcnt vmcnt(0)")
            for q in range(q0, min(q0 + 16, NT * NU)):
                b = 16 + (q % 16) * 4
                for r in range(4):
                    E(f"v_accvgpr_read_b32 v{100+r}, a{q*4+r}")
                for r in range(4):
                    E(f"v_add_f32 v{100+r}, v{100+r}, v{b+r}")
                for r in range(4):
                    E(f"v_accvgpr_write_b32 a{q*4+r}, v{100+r}")
    else:
        E("s_barrier")
        E("s_nop 15")
    CS = TN * 2 + 16
    E(f"s_mul_i32 s60, s58, {WTM*CS}")
    E(f"s_mul_i32 s61, s59, {WTN*2}")
    E("s_add_u32 s60, s60, s61")
    E("v_and_b32 v4, 15, v2")
    E(f"v_mul_u32_u24 v4, {CS}, v4")
    E("v_lshrrev_b32 v5, 4, v2")
    E("v_lshl_add_u32 v4, v5, 3, v4")
    E("v_add_u32 v4, s60, v4")
    for t in range(NT):
        for u in range(NU):
            a = (t * NU + u) * 4
            b = 16 + ((t * NU + u) % 8) * 6
            for r in range(4):
                E(f"v_accvgpr_read_b32 v{b+r}, a{a+r}")
            E(f"v_cvt_pk_bf16_f32 v{b+4}, v{b}, v{b+1}")
            E(f"v_cvt_pk_bf16_f32 v{b+5}, v{b+2}, v{b+3}")
            E(f"ds_write_b64 v4, v[{b+4}:{b+5}] offset:{t*16*CS + u*32}")
    E(f"s_branch {name}_epi")
    E.label(f"{name}_prod")
    srd_from(E, 16, 12, A_off, M * ld2)
    srd_from(E, 20, 12, B_off, N * ld2)
    E("s_sub_u32 s46, s46, 4")
    E("v_lshrrev_b32 v4, 3, v2")
    E("v_and_b32 v5, 7, v2")
    E("v_xor_b32 v5, v5, v4")
    E(f"v_mul_u32_u24 v3, {ld2}, v4")
    E("v_lshl_add_u32 v3, v5, 4, v3")
    E(f"s_mul_i32 s47, s42, {TM}")
    E("s_lshl_b32 s49, s46, 3")
    E("s_add_u32 s47, s47, s49")
    E(f"s_mul_i32 s47, s47, {ld2}")
    E(f"s_mul_i32 s48, s43, {TN}")
    E("s_add_u32 s48, s48, s49")
    E(f"s_mul_i32 s48, s48, {ld2}")
    E("s_lshl_b32 s50, s46, 10")
    if splitk > 1:
        E(f"s_mul_i32 s51, s66, {K // splitk * 2}")
        E("s_add_u32 s47, s47, s51")
        E("s_add_u32 s48, s48, s51")
    def dma(stage_sgpr):
        if 'nodma' in dbg: return
        for i in range(GA):
            E(f"s_add_u32 s51, s47, {i*32*ld2}")
            E(f"s_add_u32 m0, s{stage_sgpr}, {i*4096}")
            E("s_nop 0")
            E(f"buffer_load_dwordx4 v3, s[16:19], s51 offen lds")
        for i in range(GB):
            E(f"s_add_u32 s51, s48, {i*32*ld2}")
            E(f"s_add_u32 m0, s{stage_sgpr}, {TM*128 + i*4096}")
            E("s_nop 0")
            E(f"buffer_load_dwordx4 v3, s[20:23], s51 offen lds")
        E("s_add_u32 s47, s47, 128")
        E("s_add_u32 s48, s48, 128")
    SD = 70
    for st in range(NS):
        E(f"s_add_u32 s{SD+st}, s50, {st*SS}")
    for st in range(NS):
        dma(SD + st)
    assert (NS - 1) * ND <= 63
    E(f"s_waitcnt vmcnt({(NS-1)*ND})")
    E("s_barrier")
    def rot():
        E(f"s_mov_b32 s62, s{SD}")
        for st in range(NS - 1):
            E(f"s_mov_b32 s{SD+st}, s{SD+st+1}")
        E(f"s_mov_b32 s{SD+NS-1}, s62")
    E(f"s_mov_b32 s63, {NK-NS}")
    E.label(f"{name}_ploop")
    E(f"s_waitcnt vmcnt({(NS-2)*ND})")
    E("s_barrier")
    dma(SD)
    rot()
    E("s_sub_u32 s63, s63, 1")
    E("s_cmp_lg_u32 s63, 0")
    E(f"s_cbranch_scc1 {name}_ploop")
    for r in range(NS - 1):
        E(f"s_waitcnt vmcnt({(NS-2-r)*ND})")
        E("s_barrier")
    if splitk > 1:
        E("s_cmp_eq_u32 s66, 0")
        E(f"s_cbranch_scc1 {name}_pw")
        E("s_cmp_lg_u32 s46, 0")
        E(f"s_cbranch_scc1 {name}_pe1")
        srd_from(E, 36, 8, 0, 256)
        E("v_mov_b32 v6, s67")
        E("s_mov_b32 s63, 0x100000")
        E.label(f"{name}_poll")
        E("buffer_load_ubyte v5, v6, s[36:39], 0 offen sc1")
        E("s_waitcnt vmcnt(0)")
        E("v_readfirstlane_b32 s62, v5")
        E("s_nop 3")
        E("s_cmp_lg_u32 s62, 0")
        E(f"s_cbranch_scc1 {name}_pe1")
        E("s_sleep 1")
        E("s_sub_u32 s63, s63, 1")
        E("s_cmp_lg_u32 s63, 0")
        E(f"s_cbranch_scc1 {name}_poll")
        E.label(f"{name}_pe1")
        E("s_barrier")
        E(f"s_branch {name}_epi")
        E.label(f"{name}_pw")
        E("s_barrier")
        E(f"s_branch {name}_end")
    else:
        E("s_barrier")
    E.label(f"{name}_epi")
    if 'noepi' in dbg:
        E(f"s_branch {name}_end")
    NCH = TN // 8
    P = Pool(16, 128)
    if epi == 'mish':
        assert NCH == 28
        srd_from(E, 24, 4, 0, 3584 * 2)
        srd_from(E, 28, 12, ACT_OFF, M * N * 2)
        E("s_mov_b32 s60, 0x924924a")
        E("v_mul_hi_u32 v4, s60, v0")
        E("v_mul_u32_u24 v5, 28, v4")
        E("v_sub_u32 v5, v0, v5")
        E(f"s_mul_i32 s61, s43, {TN*2}")
        E("v_lshlrev_b32 v6, 4, v5")
        E("buffer_load_dwordx4 v[8:11], v6, s[24:27], s61 offen")
        E(f"v_mul_u32_u24 v7, {CS}, v4")
        E("v_add_u32 v7, v7, v6")
        E(f"v_mul_u32_u24 v12, {N*2}, v4")
        E("v_add_u32 v12, v12, v6")
        E(f"s_mul_i32 s62, s42, {TM*N*2}")
        E("s_add_u32 s62, s62, s61")
        E("s_waitcnt lgkmcnt(0)")
        E("s_barrier")
        E("v_cmp_gt_u32 vcc, 448, v0")
        E("s_and_saveexec_b64 s[64:65], vcc")
        E(f"s_cbranch_execz {name}_end")
        cr = [P.alloc_n(4, 4) for _ in range(8)]
        for i in range(8):
            E(f"ds_read_b128 v[{cr[i]}:{cr[i]+3}], v7 offset:{i*16*CS}")
        E("s_waitcnt vmcnt(0)")
        bb_ = P.alloc_n(8, 2)
        bfl = [bb_ + r for r in range(8)]
        E(f"s_mov_b32 s68, 0x{f2u(1.4426950408889634):08x}")
        E(f"s_mov_b32 s69, 0x{f2u(1.4426950408889634):08x}")
        E(f"s_mov_b32 s67, 0x{f2u(20.0*1.4426950408889634):08x}")
        for q in range(4):
            E(f"v_lshlrev_b32 v{bfl[2*q]}, 16, v{8+q}")
            E(f"v_and_b32 v{bfl[2*q+1]}, 0xffff0000, v{8+q}")
        LOG2E = f2u(1.4426950408889634)
        for i in range(8):
            E(f"s_waitcnt lgkmcnt({7-i})")
            c = cr[i]
            if 'nomath' in dbg:
                E(f"s_add_u32 s61, s62, {i*16*N*2}")
                E(f"buffer_store_dwordx4 v[{c}:{c+3}], v12, s[28:31], s61 offen")
                continue
            xb_ = P.alloc_n(8, 2); eb_ = P.alloc_n(8, 2)
            x = [xb_ + r for r in range(8)]
            e = [eb_ + r for r in range(8)]
            PR = lambda r: f"v[{r}:{r+1}]"
            for q in range(4):
                E(f"v_lshlrev_b32 v{x[2*q]}, 16, v{c+q}")
                E(f"v_and_b32 v{x[2*q+1]}, 0xffff0000, v{c+q}")
            for q in range(4):
                E(f"v_pk_add_f32 {PR(x[2*q])}, {PR(x[2*q])}, {PR(bfl[2*q])}")
            for q in range(4):
                E(f"v_cvt_pk_bf16_f32 v{c+q}, v{x[2*q]}, v{x[2*q+1]}")
            for q in range(4):
                E(f"v_lshlrev_b32 v{x[2*q]}, 16, v{c+q}")
                E(f"v_and_b32 v{x[2*q+1]}, 0xffff0000, v{c+q}")
            for q in range(4):
                E(f"v_pk_mul_f32 {PR(e[2*q])}, {PR(x[2*q])}, s[68:69]")
            for r in range(8):
                E(f"v_min_f32 v{e[r]}, s67, v{e[r]}")
            for r in range(8):
                E(f"v_exp_f32 v{e[r]}, v{e[r]}")
            nb_ = P.alloc_n(8, 2)
            n_ = [nb_ + r for r in range(8)]
            for q in range(4):
                E(f"v_pk_add_f32 {PR(n_[2*q])}, {PR(e[2*q])}, 2.0 op_sel_hi:[1,0]")
            for q in range(4):
                E(f"v_pk_mul_f32 {PR(n_[2*q])}, {PR(n_[2*q])}, {PR(e[2*q])}")
            for q in range(4):
                E(f"v_pk_add_f32 {PR(e[2*q])}, {PR(n_[2*q])}, 2.0 op_sel_hi:[1,0]")
            for r in range(8):
                E(f"v_rcp_f32 v{e[r]}, v{e[r]}")
            for q in range(4):
                E(f"v_pk_mul_f32 {PR(n_[2*q])}, {PR(n_[2*q])}, {PR(x[2*q])}")
            for q in range(4):
                E(f"v_pk_mul_f32 {PR(n_[2*q])}, {PR(n_[2*q])}, {PR(e[2*q])}")
            for q in range(4):
                E(f"v_cvt_pk_bf16_f32 v{c+q}, v{n_[2*q]}, v{n_[2*q+1]}")
            E(f"s_add_u32 s61, s62, {i*16*N*2}")
            if 'nostore' not in dbg:
                E(f"buffer_store_dwordx4 v[{c}:{c+3}], v12, s[28:31], s61 offen")
            P.free(*x); P.free(*e); P.free(*n_)
    else:
        lg = int(math.log2(NCH))
        RPP = 512 // NCH
        NPS = TM // RPP
        srd_from(E, 24, 12, H_OFF, XB)
        srd_from(E, 28, 6, 0, XB)
        E(f"v_lshrrev_b32 v4, {lg}, v0")
        E(f"v_and_b32 v5, {NCH-1}, v0")
        E("v_lshlrev_b32 v6, 4, v5")
        E(f"v_mul_u32_u24 v7, {CS}, v4")
        E("v_add_u32 v7, v7, v6")
        E(f"v_mul_u32_u24 v12, {N*2}, v4")
        E("v_add_u32 v12, v12, v6")
        E(f"s_mul_i32 s62, s42, {TM*N*2}")
        E(f"s_mul_i32 s61, s43, {TN*2}")
        E("s_add_u32 s62, s62, s61")
        hr = [P.alloc_n(4, 4) for _ in range(NPS)]
        for i in range(NPS):
            E(f"s_add_u32 s61, s62, {i*RPP*N*2}")
            E(f"buffer_load_dwordx4 v[{hr[i]}:{hr[i]+3}], v12, s[24:27], s61 offen")
        E("s_waitcnt lgkmcnt(0)")
        E("s_barrier")
        cr = [P.alloc_n(4, 4) for _ in range(NPS)]
        for i in range(NPS):
            E(f"ds_read_b128 v[{cr[i]}:{cr[i]+3}], v7 offset:{i*RPP*CS}")
        E("s_waitcnt vmcnt(0) lgkmcnt(0)")
        for i in range(NPS):
            c = cr[i]; hh = hr[i]
            x = [P.alloc() for _ in range(8)]
            y = [P.alloc() for _ in range(8)]
            for q in range(4):
                E(f"v_lshlrev_b32 v{x[2*q]}, 16, v{c+q}")
                E(f"v_and_b32 v{x[2*q+1]}, 0xffff0000, v{c+q}")
                E(f"v_lshlrev_b32 v{y[2*q]}, 16, v{hh+q}")
                E(f"v_and_b32 v{y[2*q+1]}, 0xffff0000, v{hh+q}")
            for r in range(8):
                E(f"v_add_f32 v{x[r]}, v{x[r]}, v{y[r]}")
            for q in range(4):
                E(f"v_cvt_pk_bf16_f32 v{c+q}, v{x[2*q]}, v{x[2*q+1]}")
            E(f"s_add_u32 s61, s62, {i*RPP*N*2}")
            E(f"buffer_store_dwordx4 v[{c}:{c+3}], v12, s[28:31], s61 offen")
            P.free(*x); P.free(*y)
    E.label(f"{name}_end")
    E("s_endpgm")
    return (nwg, 512, NS * SS)

def kernels():
    dbg = os.environ.get('GDBG', '')
    k4 = lambda E: gen_gemm(E, "k4_kernel", 128, 224, 1024, 2048, 3584, HN_OFF, W1T_OFF, 8, 4, 'mish', dbg=dbg)
    if 'split' not in dbg:
        k5 = lambda E: gen_gemm(E, "k5_kernel", 128, 64, 3584, 2048, 1024, ACT_OFF, W2T_OFF, 4, 8, 'res', NS=4, dbg=dbg)
        return [("k4_kernel", k4, 128 + 112, 102, 128), ("k5_kernel", k5, 128 + 32, 102, 128)]
    k5 = lambda E: gen_gemm(E, "k5_kernel", 128, 128, 3584, 2048, 1024, ACT_OFF, W2T_OFF, 4, 8, 'res', NS=4, dbg=dbg, splitk=2)
    return [("k4_kernel", k4, 128 + 112, 102, 128), ("k5_kernel", k5, 128 + 64, 102, 128)]
```

```python
import re
_RNG = re.compile(r"v\[(\d+):(\d+)\]|v(\d+)")
def regs_of(tok):
    out = []
    for m in _RNG.finditer(tok):
        if m.group(1) is not None:
            out += list(range(int(m.group(1)), int(m.group(2)) + 1))
        else:
            out.append(int(m.group(3)))
    return out

def rw(instr):
    s = instr.strip()
    op = s.split()[0]
    body = s[len(op):]
    body = re.split(r"\s(op_sel|op_sel_hi|neg_lo|neg_hi|offset|offen)\b", body)[0]
    ops = [o.strip() for o in body.split(",")]
    if op.startswith("ds_write"):
        return set(), set(sum((regs_of(o) for o in ops), []))
    if op.startswith("ds_read"):
        return set(regs_of(ops[0])), set(sum((regs_of(o) for o in ops[1:]), []))
    w = set(regs_of(ops[0]))
    r = set(sum((regs_of(o) for o in ops[1:]), []))
    if op.startswith("v_fmac"):
        r |= w
    return w, r

TRANS = ("v_sin_f32", "v_cos_f32", "v_exp_f32", "v_rcp_f32", "v_sqrt_f32", "v_rsq_f32", "v_log_f32")

def schedule(instrs, lat=4):
    n = len(instrs)
    info = [rw(i) for i in instrs]
    preds = [set() for _ in range(n)]
    raw = [set() for _ in range(n)]
    lastw = {}; readers = {}
    lds_prev = None
    for i, (w, r) in enumerate(info):
        for x in r:
            if x in lastw: preds[i].add(lastw[x]); raw[i].add(lastw[x])
        for x in w:
            if x in lastw: preds[i].add(lastw[x])
            for q in readers.get(x, ()):
                if q != i: preds[i].add(q)
        for x in r: readers.setdefault(x, []).append(i)
        for x in w:
            lastw[x] = i; readers[x] = []
        if instrs[i].strip().startswith("ds_"):
            if lds_prev is not None: preds[i].add(lds_prev)
            lds_prev = i
    done = [None] * n
    order = []
    remaining = set(range(n))
    npred = [len(p) for p in preds]
    succ = [[] for _ in range(n)]
    for i in range(n):
        for p in preds[i]: succ[p].append(i)
    ready = [i for i in range(n) if npred[i] == 0]
    t = 0
    while ready:
        def avail(i):
            a = 0
            for p in raw[i]:
                l = lat + (1 if instrs[p].strip().startswith(TRANS) else 0)
                a = max(a, done[p] + l)
            return a
        best = min(ready, key=lambda i: (max(avail(i), t), i))
        ready.remove(best)
        done[best] = t
        order.append(best)
        t += 1
        for s_ in succ[best]:
            npred[s_] -= 1
            if npred[s_] == 0: ready.append(s_)
    assert len(order) == n
    out = []
    for k, i in enumerate(order):
        if out:
            prev = order[k - 1]
            if instrs[prev].strip().startswith(TRANS) and prev in raw[i] and not instrs[i].strip().startswith(TRANS):
                out.append("s_nop 0")
        out.append(instrs[i])
    return out

class Capture:
    def __init__(self, E):
        self.E = E; self.buf = []
    def __call__(self, s):
        for l in s.split('\n'):
            l = l.strip()
            if not l: continue
            if l.startswith("s_nop"):
                continue
            assert l.startswith("v_") or l.startswith("ds_"), l
            self.buf.append(l)
    def flush(self):
        for l in schedule(self.buf): self.E(l)
        self.buf = []
```

```python
import sys
from asmlib import *
import gen_fft2 as gen_fft

HEADER = open('sequential_preLN__spectral_gfnet__dense_activation_mish__prompt.s.ref').read().split('; Override')[0]

def build(kernels, out):
    E = Asm()
    launches = []
    body = Asm()
    for name, fn, nv, ns, acc in kernels:
        body.raw(".p2align 8")
        body.raw(f".globl {name}")
        body.raw(f".type {name},@function")
        g, b, lds = fn(body)
        launches.append((name, g, b, lds, nv, ns, acc))
    txt = HEADER
    for name, g, b, lds, nv, ns, acc in launches:
        txt += f"; @launch kernel={name} grid=({g},1,1) block=({b},1,1) lds={lds}\n"
    txt += '.amdgcn_target "amdgcn-amd-amdhsa--gfx950"\n.text\n'
    bt = []
    for l in body.text().split("\n"):
        if l.strip().startswith("buffer_store") and " sc1" not in l:
            l = l + " sc1"
        bt.append(l)
    txt += "\n".join(bt)
    txt += '.section .rodata,"a"\n'
    seen = set()
    for name, g, b, lds, nv, ns, acc in launches:
        if name in seen: continue
        seen.add(name)
        txt += f""".p2align 6
.amdhsa_kernel {name}
  .amdhsa_next_free_vgpr {nv}
  .amdhsa_next_free_sgpr {ns}
  .amdhsa_accum_offset {acc}
  .amdhsa_group_segment_fixed_size 0
  .amdhsa_kernarg_size 80
  .amdhsa_user_sgpr_count 2
  .amdhsa_user_sgpr_kernarg_segment_ptr 1
  .amdhsa_system_sgpr_workgroup_id_x 1
.end_amdhsa_kernel
"""
    open(out, 'w').write(txt)

if __name__ == '__main__':
    out = sys.argv[1] if len(sys.argv) > 1 else 'out.s'
    ks = [("k1_kernel", gen_fft.gen_k1, 128, 102, 128),
          ("k2_kernel", gen_fft.gen_k2, 128, 102, 128),
          ("k3_kernel", gen_fft.gen_k3, 128, 102, 128)]
    try:
        import gen_gemm2 as gen_gemm
        ks += gen_gemm.kernels()
    except ImportError:
        pass
    build(ks, out)
```
